```python
import torch

def _softmax(x, axis=-1):
    return torch.softmax(x, dim=axis)

def _gelu(x):
    return torch.nn.functional.gelu(x, approximate='tanh')

def _silu(x):
    return torch.nn.functional.silu(x)

def _sigmoid(x):
    return torch.sigmoid(x)

def _layernorm(x, axis=-1, eps=1e-05):
    m = x.mean(dim=axis, keepdim=True)
    v = x.var(dim=axis, keepdim=True, unbiased=False)
    return (x - m) / torch.sqrt(v + eps)

def _scatter_add(tgt, idx, src, axis=0):
    return tgt.clone().index_add_(axis, idx, src)

def _segment_sum(src, seg, n):
    out = torch.zeros((n,) + src.shape[1:], dtype=src.dtype)
    return out.index_add_(0, seg, src)

def _pad(x, pw):
    flat = tuple((v for pair in reversed(pw) for v in pair))
    return torch.nn.functional.pad(x, flat)
kernel_name = 'standalone__tree_speculative_verify_tree_attention_over_candidate_token_tree__decode'

def setup_inputs():

    _w = lambda a: (lambda t: t.to(torch.bfloat16) if t.is_floating_point() else t)(torch.as_tensor(a))
    B, Hq, Hkv, T, C, D = (1, 32, 16, 1, 65536, 128)
    tree_mask = torch.zeros((B, T, T), dtype=float)
    for b in range(B):
        parent = torch.zeros(T, dtype=torch.int64)
        for i in range(1, T):
            parent[i] = int(torch.randint(0, i, (1,)).item())
        for i in range(T):
            j = i
            tree_mask[b, i, j] = 1.0
            while j > 0:
                j = parent[j]
                tree_mask[b, i, j] = 1.0
    return {'q': _w((lambda *s: torch.randn(*s, dtype=torch.bfloat16) * 0.8)(B, Hq, T, D)), 'k_cache': _w((lambda *s: torch.randn(*s, dtype=torch.bfloat16) * 0.8)(B, Hkv, C, D)), 'v_cache': _w((lambda *s: torch.randn(*s, dtype=torch.bfloat16) * 0.05)(B, Hkv, C, D)), 'k_tree': _w((lambda *s: torch.randn(*s, dtype=torch.bfloat16) * 0.8)(B, Hkv, T, D)), 'v_tree': _w((lambda *s: torch.randn(*s, dtype=torch.bfloat16) * 0.05)(B, Hkv, T, D)), 'tree_mask': _w(tree_mask)}

def reference(q, k_cache, v_cache, k_tree, v_tree, tree_mask):
    B, Hq, T, D = q.shape
    Hkv, C = (k_cache.shape[1], k_cache.shape[2])
    rep = Hq // Hkv
    kc = (lambda x, n, axis: torch.repeat_interleave(x, n, dim=axis))(k_cache, rep, axis=1)
    vc = (lambda x, n, axis: torch.repeat_interleave(x, n, dim=axis))(v_cache, rep, axis=1)
    kt = (lambda x, n, axis: torch.repeat_interleave(x, n, dim=axis))(k_tree, rep, axis=1)
    vt = (lambda x, n, axis: torch.repeat_interleave(x, n, dim=axis))(v_tree, rep, axis=1)
    k = torch.concatenate([kc, kt], axis=2)
    v = torch.concatenate([vc, vt], axis=2)
    scale = D ** (-0.5)
    scores = torch.einsum('bhqd,bhkd->bhqk', q, k) * scale
    ctx_mask = torch.ones((B, 1, T, C), dtype=scores.dtype)
    tm = tree_mask[:, None, :, :].clone()
    full_mask = torch.concatenate([ctx_mask, tm], axis=-1)
    scores = scores + (1.0 - full_mask) * -1000000000.0
    p = _softmax(scores, axis=-1)
    return torch.einsum('bhqk,bhkd->bhqd', p, v)
```

```python
import argparse, struct, math

NAME = "standalone__tree_speculative_verify_tree_attention_over_candidate_token_tree__decode"

def f32(x):
    return "0x%08x" % struct.unpack("<I", struct.pack("<f", x))[0]

HEADER = """; Kernarg layout for this problem (72 bytes, ptrs only, base s[0:1]):
"""

class G:
    def __init__(self):
        self.lines = []
    def __call__(self, s):
        for l in s.strip("\n").split("\n"):
            self.lines.append(l if l.endswith(":") else "    " + l.strip())
    def text(self):
        return "\n".join(self.lines) + "\n"

def vr(b, n):
    return "v[%d:%d]" % (b, b + n - 1)

def gen(a):
    W, NT, DEPTH, NSPLIT = a.W, a.NT, a.DEPTH, a.NSPLIT
    NWG = 16 * NSPLIT
    HEADB = 65536 * 256
    TILE = 4096
    STAGEB = NT * TILE
    nstages = HEADB // (NSPLIT * W * STAGEB)
    assert nstages * NSPLIT * W * STAGEB == HEADB
    assert nstages % DEPTH == 0
    fl = (" " + a.flags) if a.flags else ""
    C = (128 ** -0.5) * math.log2(math.e)
    NEG = -1e9 * math.log2(math.e)
    lds = W * 1024 + W * 512
    g = G()
    vKO, vVO = 1, 2
    vT0, vT1 = 3, 30
    vQ = 4
    vMSK = 20
    vO = 24
    vM, vL = 28, 29
    vMN, vAL = 31, 32
    vNMC = 33
    vT2, vT3 = 34, 35
    vS = 36
    vP = vS + 4 * NT
    vP = (vP + 3) // 4 * 4
    vPB = vP + 4 * NT
    vK = vPB + 8
    vV = vK + DEPTH * NT * 16
    vEND = vV + DEPTH * NT * 16
    ncomb = max(W, NSPLIT)
    vC = 36
    nv = max(vEND, vC + 6 * ncomb)
    assert nv <= 512
    sK, sV = 8, 12
    sOFF = 20
    sCNT = 16
    sC = 17
    sW = 18
    sHEAD, sSP = 19, 3
    g(f"""
s_cmp_ge_u32 s2, {NWG}
s_cbranch_scc1 L_end
s_load_dwordx4 s[28:31], s[0:1], 8
s_load_dwordx2 s[32:33], s[0:1], 0
s_load_dwordx4 s[36:39], s[0:1], 24
s_load_dwordx2 s[40:41], s[0:1], 40
s_load_dwordx4 s[44:47], s[0:1], 48
s_load_dwordx2 s[48:49], s[0:1], 64
v_lshrrev_b32 v{vT0}, 6, v0
v_and_b32 v0, 63, v0
v_readfirstlane_b32 s{sW}, v{vT0}
""")
    if a.headmajor:
        g(f"s_lshr_b32 s{sHEAD}, s2, {int(math.log2(NSPLIT))}\ns_and_b32 s{sSP}, s2, {NSPLIT-1}")
    else:
        g(f"s_and_b32 s{sHEAD}, s2, 15\ns_lshr_b32 s{sSP}, s2, 4")
    if a.kcontig:
        g(f"v_lshlrev_b32 v{vKO}, 4, v0")
    else:
        g(f"""
v_and_b32 v{vT0}, 3, v0
v_lshlrev_b32 v{vT0}, 10, v{vT0}
v_bfe_u32 v{vT1}, v0, 2, 2
v_lshl_or_b32 v{vT0}, v{vT1}, 8, v{vT0}
v_lshrrev_b32 v{vT1}, 4, v0
v_lshl_or_b32 v{vKO}, v{vT1}, 4, v{vT0}
""")
    g(f"v_lshlrev_b32 v{vVO}, 4, v0")
    if a.pattern == "a":
        chunk = HEADB // NSPLIT
        g(f"""
s_lshl_b32 s4, s{sHEAD}, 24
s_mul_i32 s5, s{sSP}, {chunk}
s_add_u32 s4, s4, s5
s_mul_i32 s{sOFF}, s{sW}, {STAGEB}
""")
        nrec, stride = chunk, W * STAGEB
    elif a.pattern == "b":
        g(f"""
s_lshl_b32 s4, s{sHEAD}, 24
s_mul_i32 s5, s{sSP}, {W}
s_add_u32 s5, s5, s{sW}
s_mul_i32 s{sOFF}, s5, {STAGEB}
""")
        nrec, stride = HEADB, NSPLIT * W * STAGEB
    elif a.pattern == "c":
        chunk = HEADB // (NSPLIT * W)
        g(f"""
s_lshl_b32 s4, s{sHEAD}, 24
s_mul_i32 s5, s{sSP}, {W}
s_add_u32 s5, s5, s{sW}
s_mul_i32 s5, s5, {chunk}
s_add_u32 s4, s4, s5
s_mov_b32 s{sOFF}, 0
""")
        nrec, stride = chunk, STAGEB
    else:
        g(f"""
s_mov_b32 s4, 0
s_mul_i32 s5, s2, {W}
s_add_u32 s5, s5, s{sW}
s_mul_i32 s{sOFF}, s5, {STAGEB}
""")
        nrec, stride = 16 * HEADB, NWG * W * STAGEB
    for t in range(1, NT):
        g(f"s_add_u32 s{sOFF+t}, s{sOFF}, {t*TILE}")
    g(f"""
s_mov_b32 s{sK+2}, {nrec}
s_mov_b32 s{sK+3}, 0x20000
s_mov_b32 s{sV+2}, {nrec}
s_mov_b32 s{sV+3}, 0x20000
s_waitcnt lgkmcnt(0)
s_add_u32 s{sK}, s28, s4
s_addc_u32 s{sK+1}, s29, 0
s_add_u32 s{sV}, s30, s4
s_addc_u32 s{sV+1}, s31, 0
""")
    kimm = [0, 1024, 2048, 3072] if a.kcontig else [0, 64, 128, 192]
    def loadK(d):
        for t in range(NT):
            for j in range(4):
                g(f"buffer_load_dwordx4 {vr(vK + (d*NT+t)*16 + j*4, 4)}, v{vKO}, s[{sK}:{sK+3}], s{sOFF+t} offen offset:{kimm[j]}{fl}")
    def loadV(d):
        for t in range(NT):
            for j in range(4):
                g(f"buffer_load_dwordx4 {vr(vV + (d*NT+t)*16 + j*4, 4)}, v{vVO}, s[{sV}:{sV+3}], s{sOFF+t} offen offset:{j*1024}{fl}")
    def advance():
        for t in range(NT):
            g(f"s_add_u32 s{sOFF+t}, s{sOFF+t}, {stride}")
    vKT = vS
    g(f"""
v_bfe_u32 v{vT0}, v0, 3, 1
v_lshlrev_b32 v{vT0}, 8, v{vT0}
v_lshrrev_b32 v{vT1}, 4, v0
v_lshlrev_b32 v{vT1}, 4, v{vT1}
v_or_b32 v{vT0}, v{vT0}, v{vT1}
s_lshl_b32 s5, s{sHEAD}, 9
s_add_u32 s32, s32, s5
s_addc_u32 s33, s33, 0
s_lshl_b32 s5, s{sHEAD}, 8
s_add_u32 s36, s36, s5
s_addc_u32 s37, s37, 0
s_add_u32 s38, s38, s5
s_addc_u32 s39, s39, 0
""")
    for t in range(4):
        g(f"global_load_dwordx4 {vr(vQ+4*t,4)}, v{vT0}, s[32:33] offset:{64*t}")
    vKT = 36
    assert vKT + 16 <= vK
    for t in range(4):
        g(f"global_load_dwordx4 {vr(vKT+4*t,4)}, v{vT1}, s[36:37] offset:{64*t}")
    g(f"""
v_and_b32 v{vT2}, 7, v0
v_lshlrev_b32 v{vT2}, 1, v{vT2}
v_lshl_or_b32 v{vT2}, v{vT1}, 2, v{vT2}
v_mov_b32 v{vT3}, 0
""")
    for r in range(4):
        g(f"global_load_ushort v{vO+r}, v{vT2}, s[38:39] offset:{16*r}")
    g(f"global_load_ushort v{vM}, v{vT3}, s[40:41]")
    nsmall = 13
    for d in range(DEPTH):
        loadK(d); loadV(d); advance()
    g(f"""
v_and_b32 v{vT0}, 1, v0
v_mov_b32 v{vT1}, 0xffff
v_lshlrev_b32 v{vT0}, 4, v{vT0}
v_lshlrev_b32 v{vT1}, v{vT0}, v{vT1}
v_bfe_u32 v{vT0}, v0, 1, 2
""")
    for r in range(4):
        g(f"v_cmp_eq_u32 vcc, {r}, v{vT0}\ns_nop 1\nv_cndmask_b32 v{vMSK+r}, 0, v{vT1}, vcc")
    g(f"""
s_mov_b32 s{sC}, {f32(C)}
s_mov_b32 s{sCNT}, {nstages//DEPTH}
s_or_b32 s5, s{sSP}, s{sW}
s_cmp_eq_u32 s5, 0
s_cselect_b32 s5, 0xffff0000, 0
s_cselect_b32 s6, {f32(0.25)}, 0
""")
    inflight = DEPTH * NT * 8
    assert inflight <= 63
    g(f"s_waitcnt vmcnt({inflight})")
    vTS = vKT + 16
    assert vTS + 4 <= vK
    for t in range(4):
        c = "0" if t == 0 else vr(vTS, 4)
        g(f"v_mfma_f32_16x16x32_bf16 {vr(vTS,4)}, {vr(vKT+4*t,4)}, {vr(vQ+4*t,4)}, {c}")
    for r in range(4):
        g(f"v_lshlrev_b32 v{vO+r}, 16, v{vO+r}\nv_and_b32 v{vO+r}, s5, v{vO+r}")
    g(f"""
v_lshlrev_b32 v{vM}, 16, v{vM}
v_sub_f32 v{vM}, 1.0, v{vM}
v_mul_f32 v{vM}, {f32(NEG)}, v{vM}
v_mov_b32 v{vL}, s6
v_fma_f32 v{vM}, v{vTS}, s{sC}, v{vM}
""")
    g("L_loop:")
    for d in range(DEPTH):
        g(f"s_waitcnt vmcnt({inflight - NT*4})")
        for j in range(4):
            for t in range(NT):
                c = "0" if j == 0 else vr(vS+4*t, 4)
                g(f"v_mfma_f32_16x16x32_bf16 {vr(vS+4*t,4)}, {vr(vK+(d*NT+t)*16+4*j,4)}, {vr(vQ+4*j,4)}, {c}")
        loadK(d)
        if NT * 4 < 8:
            g(f"s_nop {8 - NT*4 - 1}")
        n = 4 * NT
        g(f"v_max3_f32 v{vT0}, v{vS}, v{vS+1}, v{vS+2}")
        k = 3
        while k < n:
            if k + 1 < n:
                g(f"v_max3_f32 v{vT0}, v{vT0}, v{vS+k}, v{vS+k+1}"); k += 2
            else:
                g(f"v_max_f32 v{vT0}, v{vT0}, v{vS+k}"); k += 1
        g(f"""
v_mov_b32 v{vT1}, v{vT0}
s_nop 1
v_permlane16_swap_b32 v{vT0}, v{vT1}
v_max_f32 v{vT0}, v{vT0}, v{vT1}
v_mov_b32 v{vT1}, v{vT0}
s_nop 1
v_permlane32_swap_b32 v{vT0}, v{vT1}
v_max_f32 v{vT0}, v{vT0}, v{vT1}
v_mul_f32 v{vT0}, s{sC}, v{vT0}
v_max_f32 v{vMN}, v{vM}, v{vT0}
v_sub_f32 v{vAL}, v{vM}, v{vMN}
v_exp_f32 v{vAL}, v{vAL}
v_mov_b32 v{vM}, v{vMN}
""")
        for k in range(n):
            g(f"v_fma_f32 v{vP+k}, v{vS+k}, s{sC}, -v{vMN}")
        for k in range(n):
            g(f"v_exp_f32 v{vP+k}, v{vP+k}")
        g(f"v_mul_f32 v{vL}, v{vL}, v{vAL}")
        for r in range(4):
            g(f"v_mul_f32 v{vO+r}, v{vO+r}, v{vAL}")
        for k in range(n):
            g(f"v_add_f32 v{vL}, v{vL}, v{vP+k}")
        for k in range(n):
            g(f"v_cvt_pk_bf16_f32 v{vP+k}, v{vP+k}, v{vP+k}")
        for r in range(4):
            g(f"v_and_b32 v{vPB+r}, v{vP}, v{vMSK+r}")
        g(f"s_waitcnt vmcnt({inflight - NT*4})")
        for k in range(n):
            cur = vPB + 4 * (k & 1)
            nxt = vPB + 4 * ((k + 1) & 1)
            if k + 1 < n:
                for r in range(4):
                    g(f"v_and_b32 v{nxt+r}, v{vP+k+1}, v{vMSK+r}")
            else:
                g("s_nop 1")
            g(f"v_mfma_f32_16x16x32_bf16 {vr(vO,4)}, {vr(vV+d*NT*16+4*k,4)}, {vr(cur,4)}, {vr(vO,4)}")
        loadV(d)
        advance()
    g(f"""
s_sub_u32 s{sCNT}, s{sCNT}, 1
s_cmp_lg_u32 s{sCNT}, 0
s_cbranch_scc1 L_loop
""")
    def combine(n):
        ml = vC + 4 * n
        g(f"v_mov_b32 v{vM}, v{ml}")
        k = 1
        while k < n:
            if k + 1 < n:
                g(f"v_max3_f32 v{vM}, v{vM}, v{ml+2*k}, v{ml+2*k+2}"); k += 2
            else:
                g(f"v_max_f32 v{vM}, v{vM}, v{ml+2*k}"); k += 1
        for i in range(n):
            g(f"v_sub_f32 v{ml+2*i}, v{ml+2*i}, v{vM}")
        for i in range(n):
            g(f"v_exp_f32 v{ml+2*i}, v{ml+2*i}")
        g("s_nop 0")
        g(f"v_mul_f32 v{vL}, v{ml}, v{ml+1}")
        for r in range(4):
            g(f"v_mul_f32 v{vO+r}, v{ml}, v{vC+r}")
        for i in range(1, n):
            g(f"v_fmac_f32 v{vL}, v{ml+2*i}, v{ml+2*i+1}")
            for r in range(4):
                g(f"v_fmac_f32 v{vO+r}, v{ml+2*i}, v{vC+4*i+r}")
    assert vM + 1 == vL and vM % 2 == 0
    g(f"""
s_lshl_b32 s4, s{sW}, 10
s_lshl_b32 s5, s{sW}, 9
v_add_u32 v{vT0}, s4, v{vVO}
v_lshlrev_b32 v{vT2}, 3, v0
v_add_u32 v{vT1}, s5, v{vT2}
s_nop 4
ds_write_b128 v{vT0}, {vr(vO,4)}
ds_write_b64 v{vT1}, {vr(vM,2)} offset:{W*1024}
s_waitcnt vmcnt(0) lgkmcnt(0)
s_barrier
s_cmp_lg_u32 s{sW}, 0
s_cbranch_scc1 L_end
""")
    for i in range(W):
        g(f"ds_read_b64 {vr(vC+4*W+2*i,2)}, v{vT2} offset:{W*1024+512*i}")
    for i in range(W):
        g(f"ds_read_b128 {vr(vC+4*i,4)}, v{vVO} offset:{1024*i}")
    g(f"""
s_mul_i32 s4, s{sHEAD}, {NSPLIT*2048}
s_add_u32 s48, s48, s4
s_addc_u32 s49, s49, 0
s_lshl_b32 s4, s{sSP}, 11
s_add_u32 s50, s48, s4
s_addc_u32 s51, s49, 0
s_lshl_b32 s4, s{sHEAD}, 2
v_mov_b32 v{vT0}, s4
v_mov_b32 v{vT1}, 1
s_waitcnt lgkmcnt(0)
""")
    combine(W)
    g(f"""
global_store_dwordx4 v{vVO}, {vr(vO,4)}, s[50:51] sc0 sc1
global_store_dwordx2 v{vT2}, {vr(vM,2)}, s[50:51] offset:1024 sc0 sc1
s_waitcnt vmcnt(0)
s_mov_b64 s[6:7], exec
s_mov_b64 exec, 1
global_atomic_add v{vT3}, v{vT0}, v{vT1}, s[46:47] sc0 sc1
s_waitcnt vmcnt(0)
v_readfirstlane_b32 s4, v{vT3}
s_mov_b64 exec, s[6:7]
s_cmp_lg_u32 s4, {NSPLIT-1}
s_cbranch_scc1 L_end
""")
    for i in range(NSPLIT):
        if i and i % 2 == 0:
            g("s_add_u32 s48, s48, 4096\ns_addc_u32 s49, s49, 0")
        o = (i % 2) * 2048
        g(f"global_load_dwordx2 {vr(vC+4*NSPLIT+2*i,2)}, v{vT2}, s[48:49] offset:{o+1024} sc0 sc1")
        g(f"global_load_dwordx4 {vr(vC+4*i,4)}, v{vVO}, s[48:49] offset:{o} sc0 sc1")
    g(f"""
v_and_b32 v{vT0}, 7, v0
v_lshlrev_b32 v{vT0}, 1, v{vT0}
v_lshrrev_b32 v{vT1}, 4, v0
v_lshl_or_b32 v{vT0}, v{vT1}, 6, v{vT0}
v_bfe_u32 v{vT1}, v0, 3, 1
v_lshl_or_b32 v{vT0}, v{vT1}, 8, v{vT0}
s_lshl_b32 s4, s{sHEAD}, 9
s_add_u32 s44, s44, s4
s_addc_u32 s45, s45, 0
s_waitcnt vmcnt(0)
""")
    combine(NSPLIT)
    g(f"""
v_mov_b32 v{vT1}, v{vL}
s_nop 1
v_permlane16_swap_b32 v{vL}, v{vT1}
v_add_f32 v{vL}, v{vL}, v{vT1}
v_mov_b32 v{vT1}, v{vL}
s_nop 1
v_permlane32_swap_b32 v{vL}, v{vT1}
v_add_f32 v{vL}, v{vL}, v{vT1}
v_rcp_f32 v{vL}, v{vL}
s_nop 0
""")
    for r in range(4):
        g(f"v_mul_f32 v{vO+r}, v{vO+r}, v{vL}")
    g(f"""
v_cvt_pk_bf16_f32 v{vO}, v{vO}, v{vO+1}
v_cvt_pk_bf16_f32 v{vO+2}, v{vO+2}, v{vO+3}
global_store_short v{vT0}, v{vO}, s[44:45]
global_store_short_d16_hi v{vT0}, v{vO}, s[44:45] offset:16
global_store_short v{vT0}, v{vO+2}, s[44:45] offset:32
global_store_short_d16_hi v{vT0}, v{vO+2}, s[44:45] offset:48
L_end:
s_endpgm
""")
    nvv = a.vgpr if a.vgpr else nv
    assert nvv >= nv and nvv <= 256
    acc = (nvv + 3) // 4 * 4
    out = HEADER + f"; @launch grid=({NWG},1,1) block=({64*W},1,1) lds={lds}\n"
    out += f""".amdgcn_target "amdgcn-amd-amdhsa--gfx950"
.text
.globl {NAME}_kernel
.p2align 8
.type {NAME}_kernel,@function
{NAME}_kernel:
""" + g.text() + f""".section .rodata,"a"
.p2align 6
.amdhsa_kernel {NAME}_kernel
  .amdhsa_next_free_vgpr {nvv}
  .amdhsa_next_free_sgpr 64
  .amdhsa_accum_offset {acc}
  .amdhsa_group_segment_fixed_size 0
  .amdhsa_kernarg_size 72
  .amdhsa_user_sgpr_count 2
  .amdhsa_user_sgpr_kernarg_segment_ptr 1
  .amdhsa_system_sgpr_workgroup_id_x 1
.end_amdhsa_kernel
"""
    return out

if __name__ == "__main__":
    p = argparse.ArgumentParser()
    p.add_argument("-W", type=int, default=8)
    p.add_argument("--NT", type=int, default=2)
    p.add_argument("--DEPTH", type=int, default=2)
    p.add_argument("--NSPLIT", type=int, default=16)
    p.add_argument("--pattern", default="a")
    p.add_argument("--flags", default="nt")
    p.add_argument("--headmajor", type=int, default=1)
    p.add_argument("--kcontig", type=int, default=0)
    p.add_argument("--vgpr", type=int, default=0)
    p.add_argument("-o", default="/dev/stdout")
    a = p.parse_args()
    open(a.o, "w").write(gen(a))
```

```python
import argparse, struct, math

NAME = "standalone__tree_speculative_verify_tree_attention_over_candidate_token_tree__decode"

def f32(x):
    return "0x%08x" % struct.unpack("<I", struct.pack("<f", x))[0]

HEADER = """; Kernarg layout for this problem (72 bytes, ptrs only, base s[0:1]):
"""

class G:
    def __init__(self):
        self.lines = []
    def __call__(self, s):
        for l in s.strip("\n").split("\n"):
            self.lines.append(l if l.endswith(":") else "    " + l.strip())
    def text(self):
        return "\n".join(self.lines) + "\n"

def vr(b, n):
    return "v[%d:%d]" % (b, b + n - 1)

def gen(a):
    W, NT, DEPTH, NSPLIT = a.W, a.NT, a.DEPTH, a.NSPLIT
    NWG = 16 * NSPLIT
    HEADB = 65536 * 256
    TILE = 4096
    STAGEB = NT * TILE
    nstages = HEADB // (NSPLIT * W * STAGEB)
    assert nstages * NSPLIT * W * STAGEB == HEADB
    assert nstages % DEPTH == 0
    fk = a.flags if a.kflags is None else a.kflags
    fv = a.flags if a.vflags is None else a.vflags
    flk = (" " + fk) if fk else ""
    flv = (" " + fv) if fv else ""
    C = (128 ** -0.5) * math.log2(math.e)
    NEG = -1e9 * math.log2(math.e)
    lds = W * 1024 + W * 512
    g = G()
    vKO, vVO = 1, 2
    vT0, vT1 = 3, 30
    vQ = 4
    vMSK = 20
    vO = 24
    vM, vL = 28, 29
    vMN, vAL = 31, 32
    vNMC = 33
    vT2, vT3 = 34, 35
    vS = 36
    vP = vS + 4 * NT
    vP = (vP + 3) // 4 * 4
    vPB = vP + 4 * NT
    vK = vPB + 8
    vV = vK + DEPTH * NT * 16
    vEND = vV + DEPTH * NT * 16
    ncomb = max(W, NSPLIT)
    vC = 36
    nv = max(vEND, vC + 6 * ncomb)
    assert nv <= 512
    sK, sV = 8, 12
    sOFF = 20
    sCNT = 16
    sC = 17
    sW = 18
    sHEAD, sSP = 19, 3
    g(f"""
s_cmp_ge_u32 s2, {NWG}
s_cbranch_scc1 L_end
s_load_dwordx4 s[28:31], s[0:1], 8
s_load_dwordx2 s[32:33], s[0:1], 0
s_load_dwordx4 s[36:39], s[0:1], 24
s_load_dwordx2 s[40:41], s[0:1], 40
s_load_dwordx4 s[44:47], s[0:1], 48
s_load_dwordx2 s[48:49], s[0:1], 64
v_lshrrev_b32 v{vT0}, 6, v0
v_and_b32 v0, 63, v0
v_readfirstlane_b32 s{sW}, v{vT0}
""")
    if a.headmajor:
        g(f"s_lshr_b32 s{sHEAD}, s2, {int(math.log2(NSPLIT))}\ns_and_b32 s{sSP}, s2, {NSPLIT-1}")
    else:
        g(f"s_and_b32 s{sHEAD}, s2, 15\ns_lshr_b32 s{sSP}, s2, 4")
    if a.kcontig:
        g(f"v_lshlrev_b32 v{vKO}, 4, v0")
    else:
        g(f"""
v_and_b32 v{vT0}, 3, v0
v_lshlrev_b32 v{vT0}, 10, v{vT0}
v_bfe_u32 v{vT1}, v0, 2, 2
v_lshl_or_b32 v{vT0}, v{vT1}, 8, v{vT0}
v_lshrrev_b32 v{vT1}, 4, v0
v_lshl_or_b32 v{vKO}, v{vT1}, 4, v{vT0}
""")
    g(f"v_lshlrev_b32 v{vVO}, 4, v0")
    if a.pattern == "a":
        chunk = HEADB // NSPLIT
        g(f"""
s_lshl_b32 s4, s{sHEAD}, 24
s_mul_i32 s5, s{sSP}, {chunk}
s_add_u32 s4, s4, s5
s_mul_i32 s{sOFF}, s{sW}, {STAGEB}
""")
        nrec, stride = chunk, W * STAGEB
    elif a.pattern == "b":
        g(f"""
s_lshl_b32 s4, s{sHEAD}, 24
s_mul_i32 s5, s{sSP}, {W}
s_add_u32 s5, s5, s{sW}
s_mul_i32 s{sOFF}, s5, {STAGEB}
""")
        nrec, stride = HEADB, NSPLIT * W * STAGEB
    elif a.pattern == "c":
        chunk = HEADB // (NSPLIT * W)
        g(f"""
s_lshl_b32 s4, s{sHEAD}, 24
s_mul_i32 s5, s{sSP}, {W}
s_add_u32 s5, s5, s{sW}
s_mul_i32 s5, s5, {chunk}
s_add_u32 s4, s4, s5
s_mov_b32 s{sOFF}, 0
""")
        nrec, stride = chunk, STAGEB
    else:
        g(f"""
s_mov_b32 s4, 0
s_mul_i32 s5, s2, {W}
s_add_u32 s5, s5, s{sW}
s_mul_i32 s{sOFF}, s5, {STAGEB}
""")
        nrec, stride = 16 * HEADB, NWG * W * STAGEB
    for t in range(1, NT):
        g(f"s_add_u32 s{sOFF+t}, s{sOFF}, {t*TILE}")
    g(f"""
s_mov_b32 s{sK+2}, {nrec}
s_mov_b32 s{sK+3}, 0x20000
s_mov_b32 s{sV+2}, {nrec}
s_mov_b32 s{sV+3}, 0x20000
s_waitcnt lgkmcnt(0)
s_add_u32 s{sK}, s28, s4
s_addc_u32 s{sK+1}, s29, 0
s_add_u32 s{sV}, s30, s4
s_addc_u32 s{sV+1}, s31, 0
""")
    kimm = [0, 1024, 2048, 3072] if a.kcontig else [0, 64, 128, 192]
    def loadK(d):
        for t in range(NT):
            for j in range(4):
                g(f"buffer_load_dwordx4 {vr(vK + (d*NT+t)*16 + j*4, 4)}, v{vKO}, s[{sK}:{sK+3}], s{sOFF+t} offen offset:{kimm[j]}{flk}")
    def loadV(d):
        for t in range(NT):
            for j in range(4):
                g(f"buffer_load_dwordx4 {vr(vV + (d*NT+t)*16 + j*4, 4)}, v{vVO}, s[{sV}:{sV+3}], s{sOFF+t} offen offset:{j*1024}{flv}")
    def advance():
        for t in range(NT):
            g(f"s_add_u32 s{sOFF+t}, s{sOFF+t}, {stride}")
    vKT = vS
    g(f"""
v_bfe_u32 v{vT0}, v0, 3, 1
v_lshlrev_b32 v{vT0}, 8, v{vT0}
v_lshrrev_b32 v{vT1}, 4, v0
v_lshlrev_b32 v{vT1}, 4, v{vT1}
v_or_b32 v{vT0}, v{vT0}, v{vT1}
s_lshl_b32 s5, s{sHEAD}, 9
s_add_u32 s32, s32, s5
s_addc_u32 s33, s33, 0
s_lshl_b32 s5, s{sHEAD}, 8
s_add_u32 s36, s36, s5
s_addc_u32 s37, s37, 0
s_add_u32 s38, s38, s5
s_addc_u32 s39, s39, 0
""")
    for t in range(4):
        g(f"global_load_dwordx4 {vr(vQ+4*t,4)}, v{vT0}, s[32:33] offset:{64*t}")
    vKT = 36
    assert vKT + 16 <= vK
    for t in range(4):
        g(f"global_load_dwordx4 {vr(vKT+4*t,4)}, v{vT1}, s[36:37] offset:{64*t}")
    g(f"""
v_and_b32 v{vT2}, 7, v0
v_lshlrev_b32 v{vT2}, 1, v{vT2}
v_lshl_or_b32 v{vT2}, v{vT1}, 2, v{vT2}
v_mov_b32 v{vT3}, 0
""")
    for r in range(4):
        g(f"global_load_ushort v{vO+r}, v{vT2}, s[38:39] offset:{16*r}")
    g(f"global_load_ushort v{vM}, v{vT3}, s[40:41]")
    nsmall = 13
    for d in range(DEPTH):
        loadK(d); loadV(d); advance()
    g(f"""
v_and_b32 v{vT0}, 1, v0
v_mov_b32 v{vT1}, 0xffff
v_lshlrev_b32 v{vT0}, 4, v{vT0}
v_lshlrev_b32 v{vT1}, v{vT0}, v{vT1}
v_bfe_u32 v{vT0}, v0, 1, 2
""")
    for r in range(4):
        g(f"v_cmp_eq_u32 vcc, {r}, v{vT0}\ns_nop 1\nv_cndmask_b32 v{vMSK+r}, 0, v{vT1}, vcc")
    g(f"""
s_mov_b32 s{sC}, {f32(C)}
s_mov_b32 s{sCNT}, {nstages//DEPTH}
s_or_b32 s5, s{sSP}, s{sW}
s_cmp_eq_u32 s5, 0
s_cselect_b32 s5, 0xffff0000, 0
s_cselect_b32 s6, {f32(0.25)}, 0
""")
    inflight = DEPTH * NT * 8
    assert inflight <= 63
    g(f"s_waitcnt vmcnt({inflight})")
    vTS = vKT + 16
    assert vTS + 4 <= vK
    for t in range(4):
        c = "0" if t == 0 else vr(vTS, 4)
        g(f"v_mfma_f32_16x16x32_bf16 {vr(vTS,4)}, {vr(vKT+4*t,4)}, {vr(vQ+4*t,4)}, {c}")
    for r in range(4):
        g(f"v_lshlrev_b32 v{vO+r}, 16, v{vO+r}\nv_and_b32 v{vO+r}, s5, v{vO+r}")
    g(f"""
v_lshlrev_b32 v{vM}, 16, v{vM}
v_sub_f32 v{vM}, 1.0, v{vM}
v_mul_f32 v{vM}, {f32(NEG)}, v{vM}
v_mov_b32 v{vL}, s6
v_fma_f32 v{vM}, v{vTS}, s{sC}, v{vM}
""")
    g("L_loop:")
    for d in range(DEPTH):
        g(f"s_waitcnt vmcnt({inflight - NT*4})")
        for j in range(4):
            for t in range(NT):
                c = "0" if j == 0 else vr(vS+4*t, 4)
                g(f"v_mfma_f32_16x16x32_bf16 {vr(vS+4*t,4)}, {vr(vK+(d*NT+t)*16+4*j,4)}, {vr(vQ+4*j,4)}, {c}")
        loadK(d)
        if NT * 4 < 8:
            g(f"s_nop {8 - NT*4 - 1}")
        n = 4 * NT
        g(f"v_max3_f32 v{vT0}, v{vS}, v{vS+1}, v{vS+2}")
        k = 3
        while k < n:
            if k + 1 < n:
                g(f"v_max3_f32 v{vT0}, v{vT0}, v{vS+k}, v{vS+k+1}"); k += 2
            else:
                g(f"v_max_f32 v{vT0}, v{vT0}, v{vS+k}"); k += 1
        g(f"""
v_mov_b32 v{vT1}, v{vT0}
s_nop 1
v_permlane16_swap_b32 v{vT0}, v{vT1}
v_max_f32 v{vT0}, v{vT0}, v{vT1}
v_mov_b32 v{vT1}, v{vT0}
s_nop 1
v_permlane32_swap_b32 v{vT0}, v{vT1}
v_max_f32 v{vT0}, v{vT0}, v{vT1}
v_mul_f32 v{vT0}, s{sC}, v{vT0}
v_max_f32 v{vMN}, v{vM}, v{vT0}
v_sub_f32 v{vAL}, v{vM}, v{vMN}
v_exp_f32 v{vAL}, v{vAL}
v_mov_b32 v{vM}, v{vMN}
""")
        for k in range(n):
            g(f"v_fma_f32 v{vP+k}, v{vS+k}, s{sC}, -v{vMN}")
        for k in range(n):
            g(f"v_exp_f32 v{vP+k}, v{vP+k}")
        g(f"v_mul_f32 v{vL}, v{vL}, v{vAL}")
        for r in range(4):
            g(f"v_mul_f32 v{vO+r}, v{vO+r}, v{vAL}")
        for k in range(n):
            g(f"v_add_f32 v{vL}, v{vL}, v{vP+k}")
        for k in range(n):
            g(f"v_cvt_pk_bf16_f32 v{vP+k}, v{vP+k}, v{vP+k}")
        for r in range(4):
            g(f"v_and_b32 v{vPB+r}, v{vP}, v{vMSK+r}")
        g(f"s_waitcnt vmcnt({inflight - NT*4})")
        for k in range(n):
            cur = vPB + 4 * (k & 1)
            nxt = vPB + 4 * ((k + 1) & 1)
            if k + 1 < n:
                for r in range(4):
                    g(f"v_and_b32 v{nxt+r}, v{vP+k+1}, v{vMSK+r}")
            else:
                g("s_nop 1")
            g(f"v_mfma_f32_16x16x32_bf16 {vr(vO,4)}, {vr(vV+d*NT*16+4*k,4)}, {vr(cur,4)}, {vr(vO,4)}")
        loadV(d)
        advance()
    g(f"""
s_sub_u32 s{sCNT}, s{sCNT}, 1
s_cmp_lg_u32 s{sCNT}, 0
s_cbranch_scc1 L_loop
""")
    def combine(n):
        ml = vC + 4 * n
        g(f"v_mov_b32 v{vM}, v{ml}")
        k = 1
        while k < n:
            if k + 1 < n:
                g(f"v_max3_f32 v{vM}, v{vM}, v{ml+2*k}, v{ml+2*k+2}"); k += 2
            else:
                g(f"v_max_f32 v{vM}, v{vM}, v{ml+2*k}"); k += 1
        for i in range(n):
            g(f"v_sub_f32 v{ml+2*i}, v{ml+2*i}, v{vM}")
        for i in range(n):
            g(f"v_exp_f32 v{ml+2*i}, v{ml+2*i}")
        g("s_nop 0")
        g(f"v_mul_f32 v{vL}, v{ml}, v{ml+1}")
        for r in range(4):
            g(f"v_mul_f32 v{vO+r}, v{ml}, v{vC+r}")
        for i in range(1, n):
            g(f"v_fmac_f32 v{vL}, v{ml+2*i}, v{ml+2*i+1}")
            for r in range(4):
                g(f"v_fmac_f32 v{vO+r}, v{ml+2*i}, v{vC+4*i+r}")
    assert vM + 1 == vL and vM % 2 == 0
    g(f"""
s_lshl_b32 s4, s{sW}, 10
s_lshl_b32 s5, s{sW}, 9
v_add_u32 v{vT0}, s4, v{vVO}
v_lshlrev_b32 v{vT2}, 3, v0
v_add_u32 v{vT1}, s5, v{vT2}
s_nop 4
ds_write_b128 v{vT0}, {vr(vO,4)}
ds_write_b64 v{vT1}, {vr(vM,2)} offset:{W*1024}
s_waitcnt vmcnt(0) lgkmcnt(0)
s_barrier
s_cmp_lg_u32 s{sW}, 0
s_cbranch_scc1 L_end
""")
    for i in range(W):
        g(f"ds_read_b64 {vr(vC+4*W+2*i,2)}, v{vT2} offset:{W*1024+512*i}")
    for i in range(W):
        g(f"ds_read_b128 {vr(vC+4*i,4)}, v{vVO} offset:{1024*i}")
    g(f"""
s_mul_i32 s4, s{sHEAD}, {NSPLIT*2048}
s_add_u32 s48, s48, s4
s_addc_u32 s49, s49, 0
s_lshl_b32 s4, s{sSP}, 11
s_add_u32 s50, s48, s4
s_addc_u32 s51, s49, 0
s_lshl_b32 s4, s{sHEAD}, 2
v_mov_b32 v{vT0}, s4
v_mov_b32 v{vT1}, 1
s_waitcnt lgkmcnt(0)
""")
    combine(W)
    g(f"""
global_store_dwordx4 v{vVO}, {vr(vO,4)}, s[50:51] sc0 sc1
global_store_dwordx2 v{vT2}, {vr(vM,2)}, s[50:51] offset:1024 sc0 sc1
s_waitcnt vmcnt(0)
s_mov_b64 s[6:7], exec
s_mov_b64 exec, 1
global_atomic_add v{vT3}, v{vT0}, v{vT1}, s[46:47] sc0 sc1
s_waitcnt vmcnt(0)
v_readfirstlane_b32 s4, v{vT3}
s_mov_b64 exec, s[6:7]
s_cmp_lg_u32 s4, {NSPLIT-1}
s_cbranch_scc1 L_end
""")
    for i in range(NSPLIT):
        if i and i % 2 == 0:
            g("s_add_u32 s48, s48, 4096\ns_addc_u32 s49, s49, 0")
        o = (i % 2) * 2048
        g(f"global_load_dwordx2 {vr(vC+4*NSPLIT+2*i,2)}, v{vT2}, s[48:49] offset:{o+1024} sc0 sc1")
        g(f"global_load_dwordx4 {vr(vC+4*i,4)}, v{vVO}, s[48:49] offset:{o} sc0 sc1")
    g(f"""
v_and_b32 v{vT0}, 7, v0
v_lshlrev_b32 v{vT0}, 1, v{vT0}
v_lshrrev_b32 v{vT1}, 4, v0
v_lshl_or_b32 v{vT0}, v{vT1}, 6, v{vT0}
v_bfe_u32 v{vT1}, v0, 3, 1
v_lshl_or_b32 v{vT0}, v{vT1}, 8, v{vT0}
s_lshl_b32 s4, s{sHEAD}, 9
s_add_u32 s44, s44, s4
s_addc_u32 s45, s45, 0
s_waitcnt vmcnt(0)
""")
    combine(NSPLIT)
    g(f"""
v_mov_b32 v{vT1}, v{vL}
s_nop 1
v_permlane16_swap_b32 v{vL}, v{vT1}
v_add_f32 v{vL}, v{vL}, v{vT1}
v_mov_b32 v{vT1}, v{vL}
s_nop 1
v_permlane32_swap_b32 v{vL}, v{vT1}
v_add_f32 v{vL}, v{vL}, v{vT1}
v_rcp_f32 v{vL}, v{vL}
s_nop 0
""")
    for r in range(4):
        g(f"v_mul_f32 v{vO+r}, v{vO+r}, v{vL}")
    g(f"""
v_cvt_pk_bf16_f32 v{vO}, v{vO}, v{vO+1}
v_cvt_pk_bf16_f32 v{vO+2}, v{vO+2}, v{vO+3}
global_store_short v{vT0}, v{vO}, s[44:45]
global_store_short_d16_hi v{vT0}, v{vO}, s[44:45] offset:16
global_store_short v{vT0}, v{vO+2}, s[44:45] offset:32
global_store_short_d16_hi v{vT0}, v{vO+2}, s[44:45] offset:48
L_end:
s_endpgm
""")
    nvv = a.vgpr if a.vgpr else nv
    assert nvv >= nv and nvv <= 256
    acc = (nvv + 3) // 4 * 4
    out = HEADER + f"; @launch grid=({NWG},1,1) block=({64*W},1,1) lds={lds}\n"
    out += f""".amdgcn_target "amdgcn-amd-amdhsa--gfx950"
.text
.globl {NAME}_kernel
.p2align 8
.type {NAME}_kernel,@function
{NAME}_kernel:
""" + g.text() + f""".section .rodata,"a"
.p2align 6
.amdhsa_kernel {NAME}_kernel
  .amdhsa_next_free_vgpr {nvv}
  .amdhsa_next_free_sgpr 64
  .amdhsa_accum_offset {acc}
  .amdhsa_group_segment_fixed_size 0
  .amdhsa_kernarg_size 72
  .amdhsa_user_sgpr_count 2
  .amdhsa_user_sgpr_kernarg_segment_ptr 1
  .amdhsa_system_sgpr_workgroup_id_x 1
.end_amdhsa_kernel
"""
    return out

if __name__ == "__main__":
    p = argparse.ArgumentParser()
    p.add_argument("-W", type=int, default=8)
    p.add_argument("--NT", type=int, default=2)
    p.add_argument("--DEPTH", type=int, default=2)
    p.add_argument("--NSPLIT", type=int, default=16)
    p.add_argument("--pattern", default="a")
    p.add_argument("--flags", default="nt")
    p.add_argument("--kflags", default=None)
    p.add_argument("--vflags", default=None)
    p.add_argument("--headmajor", type=int, default=1)
    p.add_argument("--kcontig", type=int, default=0)
    p.add_argument("--vgpr", type=int, default=0)
    p.add_argument("-o", default="/dev/stdout")
    a = p.parse_args()
    open(a.o, "w").write(gen(a))
```

```python
import argparse, struct, math

NAME = "standalone__tree_speculative_verify_tree_attention_over_candidate_token_tree__decode"

def f32(x):
    return "0x%08x" % struct.unpack("<I", struct.pack("<f", x))[0]

HEADER = """; Kernarg layout for this problem (72 bytes, ptrs only, base s[0:1]):
"""

class G:
    def __init__(self):
        self.lines = []
    def __call__(self, s):
        for l in s.strip("\n").split("\n"):
            if l.strip():
                self.lines.append(l.strip() if l.strip().endswith(":") else "    " + l.strip())
    def text(self):
        return "\n".join(self.lines) + "\n"

def vr(b, n):
    return "v[%d:%d]" % (b, b + n - 1)

STAMP = """s_waitcnt vmcnt(0)
L_stamp:
s_memrealtime s[60:61]
s_load_dwordx2 s[62:63], s[0:1], 64
s_getreg_b32 s4, hwreg(HW_REG_XCC_ID)
s_getreg_b32 s5, hwreg(HW_REG_HW_ID)
s_waitcnt lgkmcnt(0)
s_add_u32 s62, s62, 0x20000000
s_addc_u32 s63, s63, 0
s_lshl_b32 s6, s2, 5
v_mov_b32 v1, s6
v_mov_b32 v4, s52
v_mov_b32 v5, s54
v_mov_b32 v6, s56
v_mov_b32 v7, s58
v_mov_b32 v8, s60
v_mov_b32 v9, s4
v_mov_b32 v10, s5
v_mov_b32 v11, 0
s_mov_b64 exec, 1
global_store_dwordx4 v1, v[4:7], s[62:63]
global_store_dwordx4 v1, v[8:11], s[62:63] offset:16"""

DPP = "row_mask:0xf bank_mask:0xf"

def gen(a):
    D = 4
    NSPLIT = 16
    NWG = 256
    NREC = 1 << 28
    X = a.X
    assert X <= 8 * D - 1
    st = a.stamps
    tab = a.tab
    cols = [int(x, 16) for x in a.cols.split(",")]
    cg, ct = cols[:8], cols[8:]
    hb = [i for i in range(8) if cg[i] >> 12]
    sb = [i for i in range(8) if not cg[i] >> 12]
    assert len(hb) == 4 and all(c >> 12 == 0 for c in ct)
    fl = (" " + a.flags) if a.flags else ""
    C = (128 ** -0.5) * math.log2(math.e)
    NEG = -1e9 * math.log2(math.e)
    g = G()
    vKO, vVO, vT0 = 1, 2, 3
    vQE, vQO = 4, 8
    vMSK = 12
    vO = 16
    vM, vL = 20, 21
    vT1, vT2, vT3, vCC = 22, 23, 24, 25
    vX = 26
    vS = 28
    vPB = 36
    vK = 52
    vV = vK + 16 * D
    vTB = vV + 16 * D
    P, TG = a.P, a.TG
    NTK = 16 * P // TG if P else 0
    MS = 64 - P // 4
    vPT = vTB + 1
    vTK = vTB + 5
    vL4 = vTB + 9
    sAT = 68
    nv = vTB + (8 if tab else 10 if P else 1)
    vC = 36
    assert vC + 6 * NSPLIT <= nv
    sK, sV, sT = 8, 12, 64
    sA, sB, sM, sHEAD, sSP = 24, 25, 26, 19, 3
    sH = 20
    sOV, sNX = 16, 17
    low = [0, ct[0] << 12, ct[1] << 12, (ct[0] ^ ct[1]) << 12]
    g(f"""
s_cmp_ge_u32 s2, {NWG}
s_cbranch_scc1 L_end
{"s_memrealtime s[52:53]" if st else ""}
s_load_dwordx4 s[28:31], s[0:1], 0
s_load_dwordx8 s[36:43], s[0:1], 16
s_load_dwordx4 s[44:47], s[0:1], 48
s_load_dwordx2 s[48:49], s[0:1], 64
""")
    g(f"s_mov_b32 s{sA}, 0\ns_mov_b32 s{sSP}, 0")
    for i in range(8):
        g(f"s_bitcmp1_b32 s2, {i}\ns_cselect_b32 s4, {hex(cg[i] << 12)}, 0\ns_xor_b32 s{sA}, s{sA}, s4")
        if i in sb:
            g(f"s_bitcmp1_b32 s2, {i}\ns_cselect_b32 s4, {1 << sb.index(i)}, 0\ns_or_b32 s{sSP}, s{sSP}, s4")
    g(f"""
s_lshr_b32 s{sHEAD}, s{sA}, 24
v_lshlrev_b32 v{vVO}, 4, v0
v_and_b32 v{vT0}, 3, v0
v_lshrrev_b32 v{vT1}, 4, v0
v_lshlrev_b32 v{vT0}, 4, v{vT0}
v_lshl_or_b32 v{vT0}, v{vT1}, 6, v{vT0}
v_bfe_u32 v{vT1}, v0, 2, 2
v_lshl_or_b32 v{vKO}, v{vT1}, 8, v{vT0}
v_bfe_u32 v{vT1}, v0, 3, 1
v_lshl_or_b32 v{vT1}, v{vT1}, 8, v{vT0}
v_mov_b32 v{vT2}, 0
s_mov_b32 s{sK+2}, {NREC}
s_mov_b32 s{sK+3}, 0x20000
s_mov_b32 s{sV+2}, {NREC}
s_mov_b32 s{sV+3}, 0x20000
s_cmp_eq_u32 s{sSP}, 0
s_cselect_b32 s{sT+2}, 256, 0
s_cselect_b32 s7, 1.0, 0
s_mov_b32 s{sT+3}, 0x20000
s_lshl_b32 s4, s{sHEAD}, 9
s_lshl_b32 s5, s{sHEAD}, 8
""")
    if not tab:
        for d in range(D):
            g(f"s_xor_b32 s{sH+d}, s{sA}, {hex(low[d])}")
    g(f"""
s_waitcnt lgkmcnt(0)
s_add_u32 s28, s28, s4
s_addc_u32 s29, s29, 0
s_add_u32 s38, s38, s5
s_addc_u32 s39, s39, 0
s_mov_b32 s{sK}, s30
s_mov_b32 s{sK+1}, s31
s_mov_b32 s{sV}, s36
s_mov_b32 s{sV+1}, s37
s_add_u32 s{sT}, s40, s5
s_addc_u32 s{sT+1}, s41, 0
""")
    if tab:
        g(f"""
s_lshl_b32 s4, s2, 11
s_add_u32 s4, s4, 0x38000000
s_add_u32 s50, s48, s4
s_addc_u32 s51, s49, 0
global_load_dwordx4 {vr(vTB,4)}, v{vVO}, s[50:51]
global_load_dwordx4 {vr(vTB+4,4)}, v{vVO}, s[50:51] offset:1024
s_waitcnt vmcnt(0)
""")
        for d in range(D):
            g(f"v_readlane_b32 s{sH+d}, v{vTB+d}, 0")
        g("s_nop 4")
    g(f"""
global_load_dwordx4 {vr(vQE,4)}, v{vT1}, s[28:29]
global_load_dwordx4 {vr(vS+4,4)}, v{vT0}, s[38:39]
global_load_ushort v{vM}, v{vT2}, s[42:43]
""")
    def ldK(slot, j, so):
        g(f"buffer_load_dwordx4 {vr(vK+16*slot+4*j,4)}, v{vKO}, s[{sK}:{sK+3}], s{so} offen offset:{1024*j}{fl}")
    def ldV(slot, j, so, srd=sV, f=fl):
        so = f"s{so}" if so is not None else "0"
        g(f"buffer_load_dwordx4 {vr(vV+16*slot+4*j,4)}, v{vVO}, s[{srd}:{srd+3}], {so} offen offset:{1024*j}{f}")
    order = [("K", j) for j in range(4)] + [("V", j) for j in range(4)]
    if a.alt == 1:
        order = [x for j in range(4) for x in (("K", j), ("V", j))]
    elif a.alt == 2:
        order = [("K", 0), ("K", 1), ("V", 0), ("V", 1), ("K", 2), ("K", 3), ("V", 2), ("V", 3)]
    for t in range(D):
        for (kind, j) in order:
            if kind == "K":
                ldK(t, j, sH + t)
            elif t == 0:
                ldV(D - 1, j, None, sT, "")
            else:
                ldV(t - 1, j, sH + t - 1)
    g(f"s_mov_b32 s{sOV}, s{sH+D-1}\ns_mov_b32 s{sM}, 1")
    if not tab:
        g(f"v_mov_b32 v{vTB}, s{sA}")
        for i in range(6):
            g(f"v_bfe_i32 v{vT0}, v0, {i}, 1\nv_and_b32 v{vT0}, {hex(ct[2+i] << 12)}, v{vT0}\nv_xor_b32 v{vTB}, v{vTB}, v{vT0}")
    if P:
        T = lambda n: __import__("functools").reduce(lambda x, y: x ^ y, [ct[i] for i in range(8) if n >> i & 1], 0)
        g(f"s_mov_b32 s5, 0")
        for i in hb:
            g(f"s_bitcmp1_b32 s2, {i}\ns_cselect_b32 s4, {hex(cg[i] << 12)}, 0\ns_xor_b32 s5, s5, s4")
        g(f"s_xor_b32 s5, s5, {hex(T(256 - P) << 12)}\nv_mov_b32 v{vPT}, s5")
        pc = [cg[i] for i in sb] + [T(TG), T(2 * TG)]
        for i in range(6):
            g(f"v_bfe_i32 v{vT0}, v0, {i}, 1\nv_and_b32 v{vT0}, {hex(pc[i] << 12)}, v{vT0}\nv_xor_b32 v{vPT}, v{vPT}, v{vT0}")
        assert (256 - P) % P == 0 and NTK <= 256
        g(f"""
s_lshl_b32 s4, s{sHEAD}, 12
s_add_u32 s4, s4, 0x30000000
s_add_u32 s{sAT}, s48, s4
s_addc_u32 s{sAT+1}, s49, 0
s_mov_b32 s{sAT+2}, 4
s_mov_b32 s{sAT+3}, 0x20000
v_lshlrev_b32 v{vL4}, 2, v0
""")
    g(f"""
v_and_b32 v{vT0}, 1, v0
v_mov_b32 v{vT1}, 0xffff
v_lshlrev_b32 v{vT0}, 4, v{vT0}
v_lshlrev_b32 v{vT1}, v{vT0}, v{vT1}
v_bfe_u32 v{vT0}, v0, 1, 2
""")
    for r in range(4):
        g(f"v_cmp_eq_u32 vcc, {r}, v{vT0}\nv_mov_b32 v{vO+r}, 0\ns_nop 0\nv_cndmask_b32 v{vMSK+r}, 0, v{vT1}, vcc")
    for k in range(16):
        g(f"v_and_b32 v{vPB+k}, 0x3f803f80, v{vMSK+(k&3)}")
    g(f"""
v_mov_b32 v{vCC}, {f32(C)}
v_and_b32 v{vT0}, 0x34, v0
v_cmp_eq_u32 vcc, 0, v{vT0}
v_mov_b32 v{vT1}, s7
v_bfe_i32 v{vT2}, v0, 2, 1
v_cndmask_b32 v{vL}, 0, v{vT1}, vcc
s_waitcnt vmcnt({8*D})
v_mfma_f32_16x16x32_bf16 {vr(vS,4)}, {vr(vS+4,4)}, {vr(vQE,4)}, 0
""")
    for r in range(4):
        g(f"v_and_b32 v{vQO+r}, v{vT2}, v{vQE+r}")
    for r in range(4):
        g(f"v_xor_b32 v{vQE+r}, v{vQO+r}, v{vQE+r}")
    g(f"""
v_lshlrev_b32 v{vM}, 16, v{vM}
v_sub_f32 v{vM}, 1.0, v{vM}
v_mul_f32 v{vM}, {f32(NEG)}, v{vM}
""")
    for r in range(4):
        g(f"s_nop 1\nv_fmac_f32_dpp v{vM}, v{vS+r}, v{vCC} quad_perm:[{r},{r},{r},{r}] {DPP}")
    if st:
        g(f"s_waitcnt vmcnt({8*D-1})\ns_memrealtime s[54:55]")
    rare = []
    def emit_loop(tag, X, until):
        g(f"L_loop{tag}:")
        for b in range(D):
            ks, vs = b, (b + D - 1) % D
            if tab:
                g(f"v_readlane_b32 s{sB}, v{vTB+b}, s{sM}")
                g(f"s_mov_b32 s{sNX}, s{sH+ks}\ns_nop 0\ns_mov_b32 s{sH+ks}, s{sB}")
            elif P and not until:
                g(f"s_mov_b32 s{sNX}, s{sH+ks}")
                if b == 0:
                    g(f"v_readlane_b32 s{sB}, v{vTB}, {MS-1}")
                if b % TG == 0:
                    g(f"""
v_readfirstlane_b32 s5, v{vTK+b}
v_mov_b32 v{vTK+b}, 1
s_xor_b32 s7, s{sB}, {hex(low[b])}
buffer_atomic_add v{vTK+b}, v{vL4}, s[{sAT}:{sAT+3}], 0 offen sc0 sc1
s_nop 1
v_readlane_b32 s6, v{vPT}, s5
""")
                    for k in range(6, 8):
                        if NTK > (1 << k):
                            g(f"s_bitcmp1_b32 s5, {k}\ns_cselect_b32 s4, {hex(T(TG << (k - 4)) << 12)}, 0\ns_xor_b32 s6, s6, s4")
                    g(f"""
s_cmp_lt_u32 s5, {NTK}
s_cselect_b32 s6, s6, {NREC}
s_cmp_eq_u32 s{sM}, {MS-1}
s_cselect_b32 s{sH+ks}, s7, s6
""")
                else:
                    g(f"s_xor_b32 s{sH+ks}, s{sH+ks-1}, {hex(low[b] ^ low[b-1])}")
            else:
                if b == 0:
                    g(f"v_readlane_b32 s{sB}, v{vTB}, s{sM}\ns_cmp_lt_u32 s{sM}, 64\ns_cselect_b32 s4, 0, {NREC}\ns_or_b32 s{sB}, s{sB}, s4")
                g(f"s_xor_b32 s{sH+ks}, s{sB}, {hex(low[b])}")
            for (kind, j) in order:
                g(f"s_waitcnt vmcnt({X})")
                if kind == "K":
                    S = vS + 4 * (j >> 1)
                    c = "0" if j % 2 == 0 else vr(S, 4)
                    q = vQE if j % 2 == 0 else vQO
                    g(f"v_mfma_f32_16x16x32_bf16 {vr(S,4)}, {vr(vK+16*ks+4*j,4)}, {vr(q,4)}, {c}")
                    ldK(ks, j, sH + ks)
                else:
                    g(f"v_mfma_f32_16x16x32_bf16 {vr(vO,4)}, {vr(vV+16*vs+4*j,4)}, {vr(vPB+4*j,4)}, {vr(vO,4)}")
                    ldV(vs, j, sOV)
            if until:
                pass
            elif tab or P:
                g(f"s_cmp_ge_u32 s{sNX}, {NREC}\ns_cbranch_scc1 L_done")
            elif b == 0:
                g(f"s_cmp_eq_u32 s{sM}, 65\ns_cbranch_scc1 L_done")
            g(f"s_mov_b32 s{sOV}, s{sH+ks}")
            if a.alt == 1:
                g("s_nop 2")
            for r in range(4):
                op = "v_mul_f32_dpp" if r == 0 else "v_fmac_f32_dpp"
                for p_ in range(2):
                    g(f"{op} v{vX+p_}, v{vS+4*p_+r}, v{vCC} quad_perm:[{r},{r},{r},{r}] {DPP}")
                if r < 3:
                    g("s_nop 0")
            g(f"""
v_max_f32 v{vT0}, v{vX}, v{vX+1}
v_cmp_gt_f32 vcc, v{vT0}, v{vM}
s_cbranch_vccnz L_rare{tag}{b}
L_back{tag}{b}:
v_sub_f32 v{vX}, v{vX}, v{vM}
v_sub_f32 v{vX+1}, v{vX+1}, v{vM}
v_exp_f32 v{vX}, v{vX}
v_exp_f32 v{vX+1}, v{vX+1}
v_add_f32 v{vL}, v{vL}, v{vX}
v_cvt_pk_bf16_f32 v{vT0}, v{vX}, v{vX}
v_cvt_pk_bf16_f32 v{vT1}, v{vX+1}, v{vX+1}
v_add_f32 v{vL}, v{vL}, v{vX+1}
""")
            direct, mirrored = [], []
            for u in range(4):
                y = vT0 if u < 2 else vT1
                for r in range(4):
                    if (r >> 1) == (u & 1):
                        direct.append(f"v_and_b32 v{vPB+4*u+r}, v{y}, v{vMSK+r}")
                    else:
                        mirrored.append(f"v_and_b32_dpp v{vPB+4*u+r}, v{y}, v{vMSK+r} row_half_mirror {DPP}")
            for l in direct + mirrored:
                g(l)
            if b == D - 1:
                g(f"s_add_u32 s{sM}, s{sM}, 1")
                if until:
                    g(f"s_cmp_lg_u32 s{sM}, {until}\ns_cbranch_scc1 L_loop{tag}")
                else:
                    if tab:
                        g(f"s_cmp_eq_u32 s{sM}, 64\ns_cbranch_scc0 L_loop{tag}")
                        for d in range(D):
                            g(f"v_mov_b32 v{vTB+d}, v{vTB+4+d}")
                        g(f"s_mov_b32 s{sM}, 0")
                    g(f"s_branch L_loop{tag}")
            rare.append(f"""
L_rare{tag}{b}:
s_nop 0
v_max_f32_dpp v{vT0}, v{vT0}, v{vT0} row_half_mirror {DPP}
v_mov_b32 v{vT1}, v{vT0}
s_nop 1
v_permlane16_swap_b32 v{vT0}, v{vT1}
v_max_f32 v{vT0}, v{vT0}, v{vT1}
v_mov_b32 v{vT1}, v{vT0}
s_nop 1
v_permlane32_swap_b32 v{vT0}, v{vT1}
v_max3_f32 v{vT0}, v{vT0}, v{vT1}, v{vM}
v_sub_f32 v{vT1}, v{vM}, v{vT0}
v_exp_f32 v{vT1}, v{vT1}
v_mov_b32 v{vM}, v{vT0}
v_mul_f32 v{vL}, v{vL}, v{vT1}
v_mul_f32 v{vO}, v{vO}, v{vT1}
v_mul_f32 v{vO+1}, v{vO+1}, v{vT1}
v_mul_f32 v{vO+2}, v{vO+2}, v{vT1}
v_mul_f32 v{vO+3}, v{vO+3}, v{vT1}
s_branch L_back{tag}{b}
""")
    if P:
        emit_loop("A", X, MS - 1)
        emit_loop("B", a.X2, 0)
    elif a.M2:
        assert a.M2 < 64
        emit_loop("A", X, a.M2)
        emit_loop("B", a.X2, 0)
    else:
        emit_loop("A", X, 0)
    for r in rare:
        g(r)
    g("L_done:")
    def combine(n):
        ml = vC + 4 * n
        g(f"v_mov_b32 v{vM}, v{ml}")
        k = 1
        while k < n:
            if k + 1 < n:
                g(f"v_max3_f32 v{vM}, v{vM}, v{ml+2*k}, v{ml+2*k+2}"); k += 2
            else:
                g(f"v_max_f32 v{vM}, v{vM}, v{ml+2*k}"); k += 1
        for i in range(n):
            g(f"v_sub_f32 v{ml+2*i}, v{ml+2*i}, v{vM}")
        for i in range(n):
            g(f"v_exp_f32 v{ml+2*i}, v{ml+2*i}")
        g("s_nop 0")
        g(f"v_mul_f32 v{vL}, v{ml}, v{ml+1}")
        for r in range(4):
            g(f"v_mul_f32 v{vO+r}, v{ml}, v{vC+r}")
        for i in range(1, n):
            g(f"v_fmac_f32 v{vL}, v{ml+2*i}, v{ml+2*i+1}")
            for r in range(4):
                g(f"v_fmac_f32 v{vO+r}, v{ml+2*i}, v{vC+4*i+r}")
    g(f"""
{"s_memrealtime s[56:57]" if st else ""}
s_lshl_b32 s4, s{sHEAD}, 15
s_add_u32 s48, s48, s4
s_addc_u32 s49, s49, 0
s_lshl_b32 s4, s{sSP}, 11
s_add_u32 s50, s48, s4
s_addc_u32 s51, s49, 0
s_lshl_b32 s4, s{sHEAD}, 2
v_lshlrev_b32 v{vT2}, 3, v0
v_mov_b32 v{vT0}, s4
v_mov_b32 v{vT1}, 1
global_store_dwordx2 v{vT2}, {vr(vM,2)}, s[50:51] offset:1024 sc0 sc1
global_store_dwordx4 v{vVO}, {vr(vO,4)}, s[50:51] sc0 sc1
s_waitcnt vmcnt(0)
s_mov_b64 exec, 1
global_atomic_add v{vT3}, v{vT0}, v{vT1}, s[46:47] sc0 sc1
s_waitcnt vmcnt(0)
v_readfirstlane_b32 s4, v{vT3}
s_mov_b64 exec, -1
s_cmp_lg_u32 s4, {NSPLIT-1}
{"s_memrealtime s[58:59]" if st else ""}
s_cbranch_scc1 {"L_stamp" if st else "L_end"}
""")
    for i in range(NSPLIT):
        if i and i % 2 == 0:
            g("s_add_u32 s48, s48, 4096\ns_addc_u32 s49, s49, 0")
        o = (i % 2) * 2048
        g(f"global_load_dwordx2 {vr(vC+4*NSPLIT+2*i,2)}, v{vT2}, s[48:49] offset:{o+1024} sc0 sc1")
        g(f"global_load_dwordx4 {vr(vC+4*i,4)}, v{vVO}, s[48:49] offset:{o} sc0 sc1")
    g(f"""
v_and_b32 v{vT0}, 7, v0
v_lshlrev_b32 v{vT0}, 1, v{vT0}
v_lshrrev_b32 v{vT1}, 4, v0
v_lshl_or_b32 v{vT0}, v{vT1}, 6, v{vT0}
v_bfe_u32 v{vT1}, v0, 3, 1
v_lshl_or_b32 v{vT0}, v{vT1}, 8, v{vT0}
s_lshl_b32 s4, s{sHEAD}, 9
s_add_u32 s44, s44, s4
s_addc_u32 s45, s45, 0
s_waitcnt vmcnt(0)
""")
    combine(NSPLIT)
    g(f"""
v_add_f32_dpp v{vL}, v{vL}, v{vL} row_half_mirror {DPP}
v_mov_b32 v{vT1}, v{vL}
s_nop 1
v_permlane16_swap_b32 v{vL}, v{vT1}
v_add_f32 v{vL}, v{vL}, v{vT1}
v_mov_b32 v{vT1}, v{vL}
s_nop 1
v_permlane32_swap_b32 v{vL}, v{vT1}
v_add_f32 v{vL}, v{vL}, v{vT1}
v_rcp_f32 v{vL}, v{vL}
s_nop 0
""")
    for r in range(4):
        g(f"v_mul_f32 v{vO+r}, v{vO+r}, v{vL}")
    g(f"""
v_cvt_pk_bf16_f32 v{vO}, v{vO}, v{vO+1}
v_cvt_pk_bf16_f32 v{vO+2}, v{vO+2}, v{vO+3}
global_store_short v{vT0}, v{vO}, s[44:45]
global_store_short_d16_hi v{vT0}, v{vO}, s[44:45] offset:16
global_store_short v{vT0}, v{vO+2}, s[44:45] offset:32
global_store_short_d16_hi v{vT0}, v{vO+2}, s[44:45] offset:48
{STAMP if st else ""}
L_end:
s_endpgm
""")
    acc = (nv + 3) // 4 * 4
    out = HEADER + f"; @launch grid=({NWG},1,1) block=(64,1,1) lds={a.lds}\n"
    out += f""".amdgcn_target "amdgcn-amd-amdhsa--gfx950"
.text
.globl {NAME}_kernel
.p2align 8
.type {NAME}_kernel,@function
{NAME}_kernel:
""" + g.text() + f""".section .rodata,"a"
.p2align 6
.amdhsa_kernel {NAME}_kernel
  .amdhsa_next_free_vgpr {nv}
  .amdhsa_next_free_sgpr 72
  .amdhsa_accum_offset {acc}
  .amdhsa_group_segment_fixed_size 0
  .amdhsa_kernarg_size 72
  .amdhsa_user_sgpr_count 2
  .amdhsa_user_sgpr_kernarg_segment_ptr 1
  .amdhsa_system_sgpr_workgroup_id_x 1
.end_amdhsa_kernel
"""
    return out

if __name__ == "__main__":
    p = argparse.ArgumentParser()
    p.add_argument("-X", type=int, default=24)
    p.add_argument("--X2", type=int, default=31)
    p.add_argument("--M2", type=int, default=0)
    p.add_argument("-P", type=int, default=0)
    p.add_argument("--TG", type=int, default=2)
    p.add_argument("--alt", type=int, default=0)
    p.add_argument("--tab", type=int, default=0)
    p.add_argument("--cols", default="8208,4018,2e1c,14cb,60d,10,30f,500,111,700,8,484,911,418,7e,ec9")
    p.add_argument("--flags", default="nt")
    p.add_argument("--stamps", type=int, default=0)
    p.add_argument("--lds", type=int, default=0)
    p.add_argument("-o", default="/dev/stdout")
    a = p.parse_args()
    open(a.o, "w").write(gen(a))
```

```python
import argparse, struct, math

NAME = "standalone__tree_speculative_verify_tree_attention_over_candidate_token_tree__decode"

def f32(x):
    return "0x%08x" % struct.unpack("<I", struct.pack("<f", x))[0]

HEADER = """; Kernarg layout for this problem (72 bytes, ptrs only, base s[0:1]):
"""

class G:
    def __init__(self):
        self.lines = []
    def __call__(self, s):
        for l in s.strip("\n").split("\n"):
            if l.strip():
                self.lines.append(l.strip() if l.strip().endswith(":") else "    " + l.strip())
    def text(self):
        return "\n".join(self.lines) + "\n"

def vr(b, n):
    return "v[%d:%d]" % (b, b + n - 1)

STAMP = """L_stamp:
s_mov_b64 exec, -1
s_waitcnt vmcnt(0)
s_memrealtime s[60:61]
s_load_dwordx2 s[62:63], s[0:1], 64
s_getreg_b32 s4, hwreg(HW_REG_XCC_ID)
s_getreg_b32 s5, hwreg(HW_REG_HW_ID)
s_waitcnt lgkmcnt(0)
s_add_u32 s62, s62, 0x20000000
s_addc_u32 s63, s63, 0
s_lshl_b32 s6, s2, 5
v_mov_b32 v1, s6
v_mov_b32 v4, s52
v_mov_b32 v5, s54
v_mov_b32 v6, s56
v_mov_b32 v7, s58
v_mov_b32 v8, s60
v_mov_b32 v9, s4
v_mov_b32 v10, s5
v_mov_b32 v11, s18
s_mov_b64 exec, 1
global_store_dwordx4 v1, v[4:7], s[62:63]
global_store_dwordx4 v1, v[8:11], s[62:63] offset:16"""

DPP = "row_mask:0xf bank_mask:0xf"
EMPTY = 0xffa5a5a5

def gen(a):
    D = 4
    NWG = 256
    NREC = 1 << 28
    X = a.X
    st = a.stamps
    END = "L_stamp" if st else "L_end"
    cols = [int(x, 16) for x in a.cols.split(",")]
    cg, ct = cols[:8], cols[8:]
    hb = [i for i in range(8) if cg[i] >> 12]
    sb = [i for i in range(8) if not cg[i] >> 12]
    assert len(hb) == 4 and all(c >> 12 == 0 for c in ct)
    fl = (" " + a.flags) if a.flags else ""
    co = " " + a.coh
    C = (128 ** -0.5) * math.log2(math.e)
    NEG = -1e9 * math.log2(math.e)
    MLOFF = 16384
    REGION = MLOFF + 256
    g = G()
    vKO, vVO, vT0 = 1, 2, 3
    vQE, vQO = 4, 8
    vMSK = 12
    vO = 16
    vM, vL = 20, 21
    vT1, vT2, vT3, vCC = 22, 23, 24, 25
    vX = 26
    vS = 28
    vPB = 36
    vK = 52
    vV = vK + 16 * D
    vTB = vV + 16 * D
    vCN = vTB + 1
    vMA = vTB + 2
    vOA = vTB + 3
    vPM = vTB + 4
    vPO = vPM + 8
    vPA = vPO + 60
    nv = vPA + 4
    assert nv <= 256 and vPM % 2 == 0
    vF, vFA = vK, vK + 1
    vW = vK + 4
    vA = vK + 8
    vLS = vK + 12
    vMX = vK + 13
    sK, sV, sT, sWS, sOUT = 8, 12, 64, 68, 72
    sA, sB, sM, sHEAD, sSP = 24, 25, 26, 19, 3
    sH = 20
    sOV, sOK, sP, sSO = 16, 17, 18, 27
    sCHK = 34
    sEMP = 33
    sQ0 = 50
    low = [0, ct[0] << 12, ct[1] << 12, (ct[0] ^ ct[1]) << 12]
    g(f"""
s_cmp_ge_u32 s2, {NWG}
s_cbranch_scc1 L_setup
{"s_memrealtime s[52:53]" if st else ""}
s_load_dwordx4 s[28:31], s[0:1], 0
s_load_dwordx8 s[36:43], s[0:1], 16
s_load_dwordx4 s[44:47], s[0:1], 48
s_load_dwordx2 s[48:49], s[0:1], 64
""")
    g(f"s_mov_b32 s{sA}, 0")
    for i in range(8):
        g(f"s_bitcmp1_b32 s2, {i}\ns_cselect_b32 s4, {hex(cg[i] << 12)}, 0\ns_xor_b32 s{sA}, s{sA}, s4")
    if sb == list(range(sb[0], sb[0] + 4)):
        g(f"s_bfe_u32 s{sSP}, s2, {hex((4 << 16) | sb[0])}")
    else:
        g(f"s_mov_b32 s{sSP}, 0")
        for i in sb:
            g(f"s_bitcmp1_b32 s2, {i}\ns_cselect_b32 s4, {1 << sb.index(i)}, 0\ns_or_b32 s{sSP}, s{sSP}, s4")
    g(f"""
s_lshr_b32 s{sHEAD}, s{sA}, 24
v_lshlrev_b32 v{vVO}, 4, v0
v_and_b32 v{vT0}, 3, v0
v_lshrrev_b32 v{vT1}, 4, v0
v_lshlrev_b32 v{vT0}, 4, v{vT0}
v_lshl_or_b32 v{vT0}, v{vT1}, 6, v{vT0}
v_bfe_u32 v{vT1}, v0, 2, 2
v_lshl_or_b32 v{vKO}, v{vT1}, 8, v{vT0}
v_bfe_u32 v{vT1}, v0, 3, 1
v_lshl_or_b32 v{vT1}, v{vT1}, 8, v{vT0}
v_mov_b32 v{vT2}, 0
s_mov_b32 s{sK+2}, {NREC}
s_mov_b32 s{sK+3}, 0x20000
s_mov_b32 s{sV+2}, {NREC}
s_mov_b32 s{sV+3}, 0x20000
s_cmp_eq_u32 s{sSP}, 0
s_cselect_b32 s{sT+2}, 256, 0
s_cselect_b32 s7, 1.0, 0
s_mov_b32 s{sT+3}, 0x20000
s_lshl_b32 s4, s{sHEAD}, 9
s_lshl_b32 s5, s{sHEAD}, 8
""")
    for d in range(D):
        g(f"s_xor_b32 s{sH+d}, s{sA}, {hex(low[d])}")
    g(f"""
s_waitcnt lgkmcnt(0)
s_mov_b32 s{sK}, s30
s_mov_b32 s{sK+1}, s31
""")
    def ldK(slot, j, so):
        g(f"buffer_load_dwordx4 {vr(vK+16*slot+4*j,4)}, v{vKO}, s[{sK}:{sK+3}], s{so} offen offset:{1024*j}{fl}")
    def ldV(slot, j, so, srd=sV, f=fl):
        so = f"s{so}" if so is not None else "0"
        g(f"buffer_load_dwordx4 {vr(vV+16*slot+4*j,4)}, v{vVO}, s[{srd}:{srd+3}], {so} offen offset:{1024*j}{f}")
    for j in range(4):
        ldK(0, j, sH)
    g(f"""
s_add_u32 s28, s28, s4
s_addc_u32 s29, s29, 0
s_add_u32 s38, s38, s5
s_addc_u32 s39, s39, 0
s_add_u32 s{sT}, s40, s5
s_addc_u32 s{sT+1}, s41, 0
s_mov_b32 s{sV}, s36
s_mov_b32 s{sV+1}, s37
global_load_dwordx4 {vr(vQE,4)}, v{vT1}, s[28:29]
global_load_dwordx4 {vr(vS+4,4)}, v{vT0}, s[38:39]
global_load_ushort v{vM}, v{vT2}, s[42:43]
""")
    ldV(D - 1, 0, None, sT, "")
    for t in range(1, D):
        for j in range(4):
            ldK(t, j, sH + t)
        for j in range(4):
            ldV(t - 1, j, sH + t - 1)
    g(f"s_mov_b32 s{sOV}, s{sH+D-1}\ns_mov_b32 s{sM}, 1")
    g(f"v_mov_b32 v{vTB}, s{sA}")
    for i in range(6):
        g(f"v_bfe_i32 v{vT0}, v0, {i}, 1\nv_and_b32 v{vT0}, {hex(ct[2+i] << 12)}, v{vT0}\nv_xor_b32 v{vTB}, v{vTB}, v{vT0}")
    g(f"""
v_and_b32 v{vT0}, 1, v0
v_mov_b32 v{vT1}, 0xffff
v_lshlrev_b32 v{vT0}, 4, v{vT0}
v_lshlrev_b32 v{vT1}, v{vT0}, v{vT1}
v_bfe_u32 v{vT0}, v0, 1, 2
""")
    for r in range(4):
        g(f"v_cmp_eq_u32 vcc, {r}, v{vT0}\nv_mov_b32 v{vO+r}, 0\ns_nop 0\nv_cndmask_b32 v{vMSK+r}, 0, v{vT1}, vcc")
    for k in range(4):
        g(f"v_and_b32 v{vPB+k}, 0x3f803f80, v{vMSK+k}")
    for k in range(4, 16, 2):
        g(f"v_mov_b64 {vr(vPB+k,2)}, 0\nv_mov_b64 {vr(vV+16*(D-1)+k,2)}, 0")
    g(f"""
v_mov_b32 v{vCC}, {f32(C)}
v_and_b32 v{vT0}, 0x34, v0
v_cmp_eq_u32 vcc, 0, v{vT0}
v_mov_b32 v{vT1}, s7
v_bfe_i32 v{vT2}, v0, 2, 1
v_cndmask_b32 v{vL}, 0, v{vT1}, vcc
s_mul_i32 s5, s{sHEAD}, {a.rstride}
s_add_u32 s{sWS}, s48, s5
s_addc_u32 s{sWS+1}, s49, 0
s_mov_b32 s{sWS+2}, {REGION}
s_mov_b32 s{sWS+3}, 0x20000
s_add_u32 s{sOUT}, s44, s4
s_addc_u32 s{sOUT+1}, s45, 0
s_mov_b32 s{sOUT+2}, 512
s_mov_b32 s{sOUT+3}, 0x20000
s_lshl_b32 s5, s{sHEAD}, 2
s_add_u32 s46, s46, s5
s_addc_u32 s47, s47, 0
s_lshl_b32 s{sSO}, s{sSP}, 10
s_mov_b32 s{sEMP}, {hex(EMPTY)}
v_bfe_u32 v{vT1}, v0, 3, 1
v_and_b32 v{vT0}, 7, v0
v_lshlrev_b32 v{vT0}, 1, v{vT0}
v_lshl_or_b32 v{vT0}, v{vT1}, 8, v{vT0}
v_lshrrev_b32 v{vT3}, 4, v0
v_lshl_or_b32 v{vOA}, v{vT3}, 6, v{vT0}
s_lshl_b32 s5, s{sSP}, 3
s_add_u32 s5, s5, {MLOFF}
v_lshl_add_u32 v{vMA}, v{vT1}, 7, s5
v_mov_b32 v{vCN}, 0
v_and_b32 v{vT0}, 3, v0
v_cmp_eq_u32 s[{sQ0}:{sQ0+1}], 0, v{vT0}
v_lshlrev_b32 v{vT0}, 5, v{vT0}
v_xor_b32 v{vPA}, v{vT0}, v{vMA}
v_xor_b32 v{vPA+1}, 8, v{vPA}
v_xor_b32 v{vPA+2}, 16, v{vPA}
v_xor_b32 v{vPA+3}, 24, v{vPA}
s_mov_b32 s{sP}, 0
s_mov_b64 s[{sCHK}:{sCHK+1}], -1
s_waitcnt vmcnt({8*(D-1)+1})
v_mfma_f32_16x16x32_bf16 {vr(vS,4)}, {vr(vS+4,4)}, {vr(vQE,4)}, 0
""")
    for r in range(4):
        g(f"v_and_b32 v{vQO+r}, v{vT2}, v{vQE+r}")
    for r in range(4):
        g(f"v_xor_b32 v{vQE+r}, v{vQO+r}, v{vQE+r}")
    g(f"""
v_lshlrev_b32 v{vM}, 16, v{vM}
v_sub_f32 v{vM}, 1.0, v{vM}
v_mul_f32 v{vM}, {f32(NEG)}, v{vM}
""")
    for r in range(4):
        g(f"s_nop 1\nv_fmac_f32_dpp v{vM}, v{vS+r}, v{vCC} quad_perm:[{r},{r},{r},{r}] {DPP}")
    if st:
        g(f"s_memrealtime s[54:55]")
    assert X <= 28
    rare = []
    def mfK(ks, j):
        S = vS + 4 * (j >> 1)
        c = "0" if j % 2 == 0 else vr(S, 4)
        q = vQE if j % 2 == 0 else vQO
        g(f"v_mfma_f32_16x16x32_bf16 {vr(S,4)}, {vr(vK+16*ks+4*j,4)}, {vr(q,4)}, {c}")
    def mfV(vs, j):
        g(f"v_mfma_f32_16x16x32_bf16 {vr(vO,4)}, {vr(vV+16*vs+4*j,4)}, {vr(vPB+4*j,4)}, {vr(vO,4)}")
    def softmax(tag):
        for r in range(4):
            op = "v_mul_f32_dpp" if r == 0 else "v_fmac_f32_dpp"
            for p_ in range(2):
                g(f"{op} v{vX+p_}, v{vS+4*p_+r}, v{vCC} quad_perm:[{r},{r},{r},{r}] {DPP}")
            if r < 3:
                g("s_nop 0")
        g(f"""
v_max_f32 v{vT0}, v{vX}, v{vX+1}
v_cmp_gt_f32 vcc, v{vT0}, v{vM}
s_cbranch_vccnz L_rare{tag}
L_back{tag}:
v_sub_f32 v{vX}, v{vX}, v{vM}
v_sub_f32 v{vX+1}, v{vX+1}, v{vM}
v_exp_f32 v{vX}, v{vX}
v_exp_f32 v{vX+1}, v{vX+1}
v_add_f32 v{vL}, v{vL}, v{vX}
v_cvt_pk_bf16_f32 v{vT0}, v{vX}, v{vX}
v_cvt_pk_bf16_f32 v{vT1}, v{vX+1}, v{vX+1}
v_add_f32 v{vL}, v{vL}, v{vX+1}
""")
        direct, mirrored = [], []
        for u in range(4):
            y = vT0 if u < 2 else vT1
            for r in range(4):
                if (r >> 1) == (u & 1):
                    direct.append(f"v_and_b32 v{vPB+4*u+r}, v{y}, v{vMSK+r}")
                else:
                    mirrored.append(f"v_and_b32_dpp v{vPB+4*u+r}, v{y}, v{vMSK+r} row_half_mirror {DPP}")
        for l in direct + mirrored:
            g(l)
        rare.append(f"""
L_rare{tag}:
s_nop 0
v_max_f32_dpp v{vT0}, v{vT0}, v{vT0} row_half_mirror {DPP}
v_mov_b32 v{vT1}, v{vT0}
s_nop 1
v_permlane16_swap_b32 v{vT0}, v{vT1}
v_max_f32 v{vT0}, v{vT0}, v{vT1}
v_mov_b32 v{vT1}, v{vT0}
s_nop 1
v_permlane32_swap_b32 v{vT0}, v{vT1}
v_max3_f32 v{vT0}, v{vT0}, v{vT1}, v{vM}
v_sub_f32 v{vT1}, v{vM}, v{vT0}
v_exp_f32 v{vT1}, v{vT1}
v_mov_b32 v{vM}, v{vT0}
v_mul_f32 v{vL}, v{vL}, v{vT1}
v_mul_f32 v{vO}, v{vO}, v{vT1}
v_mul_f32 v{vO+1}, v{vO+1}, v{vT1}
v_mul_f32 v{vO+2}, v{vO+2}, v{vT1}
v_mul_f32 v{vO+3}, v{vO+3}, v{vT1}
s_branch L_back{tag}
""")
    def emit_loop(tag, X, until, peek):
        g(f"L_loop{tag}:")
        for b in range(D):
            ks, vs = b, (b + D - 1) % D
            if b == 0:
                g(f"v_readlane_b32 s{sB}, v{vTB}, s{sM}\ns_add_u32 s{sM}, s{sM}, 1")
                if peek:
                    g(f"s_cmp_eq_u32 s{sM}, {peek}\ns_cbranch_scc1 L_peek\nL_peeked:")
                g(f"s_mov_b32 s{sH}, s{sB}")
            else:
                g(f"s_xor_b32 s{sH+ks}, s{sB}, {hex(low[b])}")
            for j in range(4):
                g(f"s_waitcnt vmcnt({X})"); mfK(ks, j); ldK(ks, j, sH + ks)
            for j in range(4):
                g(f"s_waitcnt vmcnt({X})"); mfV(vs, j); ldV(vs, j, sH + vs)
            softmax(f"{tag}{b}")
        g(f"s_cmp_lg_u32 s{sM}, {until}\ns_cbranch_scc1 L_loop{tag}")
    if a.M2:
        emit_loop("A", X, a.M2, a.peek)
        emit_loop("B", a.X2, 64, 0)
    else:
        emit_loop("A", X, 64, a.peek)
    def pollML():
        for k in range(4):
            g(f"buffer_load_dwordx2 {vr(vPM+2*k,2)}, v{vPA+k}, s[{sWS}:{sWS+3}], 0 offen{co}")
    def pollO():
        for j in range(1, 16):
            g(f"s_xor_b32 s{4+(j&1)}, s{sSO}, {j << 10}")
            g(f"buffer_load_dwordx4 {vr(vPO+4*(j-1),4)}, v{vVO}, s[{sWS}:{sWS+3}], s{4+(j&1)} offen{co}")
    Q = []
    for t in range(4):
        Q += [("K", t, j) for j in range(4)] + [("V", (t + 3) % 4, j) for j in range(4)]
    def need(item, cap=63):
        i = Q.index(item)
        g(f"s_waitcnt vmcnt({min(len(Q) - 1 - i, cap)})")
        del Q[:i + 1]
    g(f"v_cmp_eq_u32 vcc, 0, v{vCN}\ns_cbranch_vccnz L_wait\nL_ready:")
    for j in range(4):
        need(("K", 0, j)); mfK(0, j)
    g(f"""
v_and_b32 v{vFA}, 15, v0
v_lshlrev_b32 v{vFA}, 3, v{vFA}
v_add_u32 v{vFA}, {MLOFF}, v{vFA}
""")
    def peekF():
        g(f"buffer_load_dword v{vF}, v{vFA}, s[{sWS}:{sWS+3}], 0 offen{co}")
    if a.fat == 0:
        peekF(); Q.append(("F", 0, 0))
    for j in range(4):
        need(("V", 3, j), a.XD); mfV(3, j); ldV(3, j, sH + 3); Q.append(("L", 3, j))
    if a.fat == 1:
        peekF(); Q.append(("F", 0, 0))
    softmax("D0")
    for b in range(1, D):
        for j in range(4):
            need(("K", b, j)); mfK(b, j)
        for j in range(4):
            need(("V", b - 1, j)); mfV(b - 1, j)
        softmax(f"D{b}")
    g(f"""
v_add_f32_dpp v{vL}, v{vL}, v{vL} row_half_mirror {DPP}
v_mov_b32 v{vT1}, v{vL}
s_nop 1
v_permlane16_swap_b32 v{vL}, v{vT1}
v_add_f32 v{vL}, v{vL}, v{vT1}
v_mov_b32 v{vT1}, v{vL}
s_nop 1
v_permlane32_swap_b32 v{vL}, v{vT1}
v_add_f32 v{vL}, v{vL}, v{vT1}
""")
    for j in range(4):
        need(("L", 3, j)); mfV(3, j)
    if a.fat == 1:
        need(("F", 0, 0))
    assert not Q
    g(f"""
{"s_memrealtime s[56:57]" if st else ""}
v_cmp_eq_u32 vcc, s{sEMP}, v{vF}
s_mov_b64 exec, 0x101
buffer_store_dwordx2 {vr(vM,2)}, v{vMA}, s[{sWS}:{sWS+3}], 0 offen{co}
s_mov_b64 exec, -1
s_bcnt1_i32_b32 s4, vcc_lo
s_nop 1
s_cmp_le_u32 s4, {2 * (a.T + 1)}
buffer_store_dwordx4 {vr(vO,4)}, v{vVO}, s[{sWS}:{sWS+3}], s{sSO} offen{co}
s_cbranch_scc0 L_final
L_poll:
""")
    pollML(); pollO()
    g("s_waitcnt vmcnt(15)")
    g(f"""
L_have0:
v_cndmask_b32 v{vPM}, v{vPM}, v{vM}, s[{sQ0}:{sQ0+1}]
v_cndmask_b32 v{vPM+1}, v{vPM+1}, v{vL}, s[{sQ0}:{sQ0+1}]
L_have:
v_max3_f32 v{vMX}, v{vPM+2}, v{vPM+4}, v{vPM+6}
v_max_f32 v{vMX}, v{vMX}, v{vPM}
s_nop 1
v_max_f32_dpp v{vMX}, v{vMX}, v{vMX} quad_perm:[1,0,3,2] {DPP}
s_nop 1
v_max_f32_dpp v{vMX}, v{vMX}, v{vMX} quad_perm:[2,3,0,1] {DPP}
""")
    for k in range(4):
        g(f"v_sub_f32 v{vW+k}, v{vPM+2*k}, v{vMX}")
    for k in range(4):
        g(f"v_exp_f32 v{vW+k}, v{vW+k}")
    g(f"v_mul_f32 v{vLS}, v{vW}, v{vPM+1}")
    for k in range(1, 4):
        g(f"v_fmac_f32 v{vLS}, v{vW+k}, v{vPM+2*k+1}")
    g(f"""
v_cmp_u_f32 vcc, v{vLS}, v{vLS}
s_nop 0
v_add_f32_dpp v{vLS}, v{vLS}, v{vLS} quad_perm:[1,0,3,2] {DPP}
s_and_b64 vcc, vcc, s[{sCHK}:{sCHK+1}]
s_cbranch_vccnz L_fail
v_add_f32_dpp v{vLS}, v{vLS}, v{vLS} quad_perm:[2,3,0,1] {DPP}
v_rcp_f32 v{vLS}, v{vLS}
""")
    for j in range(16):
        q = j >> 2
        if j:
            g(f"s_waitcnt vmcnt({15 - j})")
        op = "v_mul_f32_dpp" if j == 0 else "v_fmac_f32_dpp"
        src = vPO + 4 * (j - 1) if j else vO
        for r in range(4):
            g(f"{op} v{vA+r}, v{vW+(j&3)}, v{src+r} quad_perm:[{q},{q},{q},{q}] {DPP}")
    for r in range(4):
        g(f"v_mul_f32 v{vA+r}, v{vA+r}, v{vLS}")
    g(f"""
v_cmp_u_f32 vcc, v{vA}, v{vA+1}
v_cmp_u_f32 s[4:5], v{vA+2}, v{vA+3}
v_cvt_pk_bf16_f32 v{vA}, v{vA}, v{vA+1}
v_cvt_pk_bf16_f32 v{vA+2}, v{vA+2}, v{vA+3}
s_or_b64 vcc, vcc, s[4:5]
s_and_b64 vcc, vcc, s[{sCHK}:{sCHK+1}]
s_cbranch_vccnz L_fail
buffer_store_short v{vA}, v{vOA}, s[{sOUT}:{sOUT+3}], 0 offen
buffer_store_short_d16_hi v{vA}, v{vOA}, s[{sOUT}:{sOUT+3}], 0 offen offset:16
buffer_store_short v{vA+2}, v{vOA}, s[{sOUT}:{sOUT+3}], 0 offen offset:32
buffer_store_short_d16_hi v{vA+2}, v{vOA}, s[{sOUT}:{sOUT+3}], 0 offen offset:48
{"s_memrealtime s[58:59]" if st else ""}
{f"s_or_b32 s{sP}, s{sP}, 16" if st else ""}
{"s_branch L_stamp" if st else "s_endpgm"}
L_fail:
s_cmp_eq_u32 s{sP}, 0
s_cbranch_scc0 L_exact
L_final:
s_mov_b32 s{sP}, 1
s_waitcnt vmcnt(0)
buffer_load_dword v{vF}, v{vFA}, s[{sWS}:{sWS+3}], 0 offen{co}
s_waitcnt vmcnt(0)
v_cmp_eq_u32 vcc, s{sEMP}, v{vF}
s_cbranch_vccz L_poll
{"s_memrealtime s[58:59]" if st else ""}
s_branch {END}
L_exact:
{"s_memrealtime s[58:59]" if st else ""}
s_waitcnt vmcnt(0)
""")
    for k in range(68):
        g(f"v_cmpx_ne_u32 vcc, s{sEMP}, v{vPM+k}")
    g(f"""
s_nop 4
s_cmp_eq_u64 vcc, -1
s_cbranch_scc0 {END}
s_mov_b64 s[{sCHK}:{sCHK+1}], 0
s_branch L_have
L_peek:
global_load_dword v{vCN}, v{vCN}, s[46:47]{co}
s_branch L_peeked
L_wait:
v_mov_b32 v{vT0}, 0
global_load_dword v{vCN}, v{vT0}, s[46:47]{co}
s_waitcnt vmcnt(0)
v_cmp_eq_u32 vcc, 0, v{vCN}
s_cbranch_vccnz L_wait
s_branch L_ready
""")
    for r in rare:
        g(r)
    g(f"""
L_setup:
s_cmp_ge_u32 s2, {NWG+16}
s_cbranch_scc1 L_end
s_load_dwordx4 s[44:47], s[0:1], 56
s_sub_u32 s3, s2, {NWG}
s_mul_i32 s5, s3, {a.rstride}
s_lshl_b32 s4, s3, 2
v_mov_b32 v4, {hex(EMPTY)}
v_mov_b32 v5, v4
v_mov_b32 v6, v4
v_mov_b32 v7, v4
v_lshlrev_b32 v8, 4, v0
v_mov_b32 v9, s4
v_mov_b32 v10, 1
s_mov_b32 s{sWS+2}, {REGION}
s_mov_b32 s{sWS+3}, 0x20000
s_mov_b32 s6, 0
s_waitcnt lgkmcnt(0)
s_add_u32 s{sWS}, s46, s5
s_addc_u32 s{sWS+1}, s47, 0
L_clear:
buffer_store_dwordx4 v[4:7], v8, s[{sWS}:{sWS+3}], s6 offen{co}
s_add_u32 s6, s6, 1024
s_cmp_lt_u32 s6, {REGION}
s_cbranch_scc1 L_clear
s_waitcnt vmcnt(0)
s_mov_b64 exec, 1
global_store_dword v9, v10, s[44:45]{co}
s_endpgm
{STAMP if st else ""}
L_end:
s_endpgm
""")
    acc = (nv + 3) // 4 * 4
    out = HEADER + f"; @launch grid=({NWG+16},1,1) block=(64,1,1) lds={a.lds}\n"
    out += f""".amdgcn_target "amdgcn-amd-amdhsa--gfx950"
.text
.globl {NAME}_kernel
.p2align 8
.type {NAME}_kernel,@function
{NAME}_kernel:
""" + g.text() + f""".section .rodata,"a"
.p2align 6
.amdhsa_kernel {NAME}_kernel
  .amdhsa_next_free_vgpr {nv}
  .amdhsa_next_free_sgpr 80
  .amdhsa_accum_offset {acc}
  .amdhsa_group_segment_fixed_size 0
  .amdhsa_kernarg_size 72
  .amdhsa_user_sgpr_count 2
  .amdhsa_user_sgpr_kernarg_segment_ptr 1
  .amdhsa_system_sgpr_workgroup_id_x 1
.end_amdhsa_kernel
"""
    return out

if __name__ == "__main__":
    p = argparse.ArgumentParser()
    p.add_argument("-X", type=int, default=20)
    p.add_argument("--X2", type=int, default=26)
    p.add_argument("--XD", type=int, default=27)
    p.add_argument("--M2", type=int, default=0)
    p.add_argument("--peek", type=int, default=40)
    p.add_argument("--fat", type=int, default=0)
    p.add_argument("-T", type=int, default=2)
    p.add_argument("--rstride", type=int, default=1069056)
    p.add_argument("--cols", default="8208,4018,2e1c,14cb,60d,10,30f,500,111,700,8,484,911,418,7e,ec9")
    p.add_argument("--flags", default="nt")
    p.add_argument("--coh", default="sc1")
    p.add_argument("--stamps", type=int, default=0)
    p.add_argument("--lds", type=int, default=0)
    p.add_argument("-o", default="/dev/stdout")
    a = p.parse_args()
    open(a.o, "w").write(gen(a))
```

```python
import argparse, struct, math
from gen7 import NAME, f32, HEADER, G, vr, STAMP, DPP, EMPTY

def gen(a):
    D = 8
    NWG = 256
    NREC = 1 << 28
    X, XV = a.X, a.XV or a.X
    st, tab = a.stamps, a.tab
    END = "L_stamp" if st else "L_end"
    cols = [int(x, 16) for x in a.cols.split(",")]
    cg, ct = cols[:8], cols[8:]
    hb = [i for i in range(8) if cg[i] >> 12]
    sb = [i for i in range(8) if not cg[i] >> 12]
    assert len(hb) == 4 and all(c >> 12 == 0 for c in ct)
    fl = (" " + a.flags) if a.flags else ""
    co = " " + a.coh
    C = (128 ** -0.5) * math.log2(math.e)
    NEG = -1e9 * math.log2(math.e)
    MLOFF = 16384
    REGION = MLOFF + 256
    g = G()
    vAD, vVO, vT0 = 1, 2, 3
    vQE, vQO = 4, 8
    vMSK = 12
    vO = 16
    vM, vL = 20, 21
    vT1, vT2, vT3, vCC = 22, 23, 24, 25
    vX = 26
    vZ = 28
    vY = 30
    vLA = 34
    vXT = 35
    vS = 36
    vPB = 44
    vTV = 52
    vCN, vMA, vOA = 56, 57, 58
    vF, vFA = 59, 60
    vLS, vMX = 61, 62
    vTB = 64
    vPA = 72
    vW, vA = 76, 80
    vPM = 84
    vR = 96
    vPO = vR
    nv = vR + 16 * D
    sR, sT, sWS, sOUT = 8, 64, 68, 72
    sA, sB, sM, sHEAD, sSP = 24, 25, 26, 19, 3
    sH = 20
    sP, sSO = 18, 27
    sCHK, sEMP = 34, 33
    sQ = 76
    T = lambda n: __import__("functools").reduce(lambda x, y: x ^ y, [ct[i] for i in range(8) if n >> i & 1], 0) << 12
    g(f"""
s_cmp_ge_u32 s2, {NWG}
s_cbranch_scc1 L_setup
{"s_memrealtime s[52:53]" if st else ""}
s_load_dwordx4 s[28:31], s[0:1], 0
s_load_dwordx8 s[36:43], s[0:1], 16
s_load_dwordx4 s[44:47], s[0:1], 48
s_load_dwordx2 s[48:49], s[0:1], 64
s_mov_b32 s{sA}, 0
""")
    for i in range(8):
        g(f"s_bitcmp1_b32 s2, {i}\ns_cselect_b32 s4, {hex(cg[i] << 12)}, 0\ns_xor_b32 s{sA}, s{sA}, s4")
    if sb == list(range(sb[0], sb[0] + 4)):
        g(f"s_bfe_u32 s{sSP}, s2, {hex((4 << 16) | sb[0])}")
    else:
        g(f"s_mov_b32 s{sSP}, 0")
        for i in sb:
            g(f"s_bitcmp1_b32 s2, {i}\ns_cselect_b32 s4, {1 << sb.index(i)}, 0\ns_or_b32 s{sSP}, s{sSP}, s4")
    g(f"""
s_lshr_b32 s{sHEAD}, s{sA}, 24
v_lshlrev_b32 v{vVO}, 4, v0
v_and_b32 v{vT0}, 3, v0
v_lshrrev_b32 v{vT1}, 4, v0
v_lshlrev_b32 v{vT0}, 4, v{vT0}
v_lshl_or_b32 v{vT0}, v{vT1}, 6, v{vT0}
v_bfe_u32 v{vT1}, v0, 2, 2
v_lshl_or_b32 v{vAD}, v{vT1}, 8, v{vT0}
v_bfe_u32 v{vT1}, v0, 3, 1
v_lshl_or_b32 v{vT1}, v{vT1}, 8, v{vT0}
v_mov_b32 v{vT2}, 0
s_mov_b32 s{sR+2}, {NREC}
s_mov_b32 s{sR+3}, 0x20000
s_cmp_eq_u32 s{sSP}, 0
s_cselect_b32 s{sT+2}, 256, 0
s_cselect_b32 s7, 1.0, 0
s_mov_b32 s{sT+3}, 0x20000
s_lshl_b32 s4, s{sHEAD}, 9
s_lshl_b32 s5, s{sHEAD}, 8
s_mov_b32 s{sB}, s{sA}
s_waitcnt lgkmcnt(0)
s_mov_b32 s{sR}, s30
s_mov_b32 s{sR+1}, s31
""")
    if tab:
        g(f"""
s_lshl_b32 s6, s2, 11
s_add_u32 s6, s6, 0x38000000
s_add_u32 s50, s48, s6
s_addc_u32 s51, s49, 0
v_lshlrev_b32 v{vT3}, 5, v0
global_load_dwordx4 {vr(vTB,4)}, v{vT3}, s[50:51]
global_load_dwordx4 {vr(vTB+4,4)}, v{vT3}, s[50:51] offset:16
s_mov_b32 s{sM}, 0
s_waitcnt vmcnt(0)
""")
    def off(b):
        h = sH + (b & 1)
        if tab:
            g(f"v_readlane_b32 s6, v{vTB+b}, s{sM}\ns_nop 0\ns_mov_b32 s{h}, s6")
        else:
            g(f"s_xor_b32 s{h}, s{sB}, {hex(T(b))}")
        return h
    def ld(slot, j, so):
        g(f"buffer_load_dwordx4 {vr(vR+16*slot+4*j,4)}, v{vAD}, s[{sR}:{sR+3}], s{so} offen offset:{1024*j}{fl}")
    for t in range(D):
        h = off(t)
        for j in range(4):
            ld(t, j, h)
        if t == 0:
            g(f"""
s_add_u32 s28, s28, s4
s_addc_u32 s29, s29, 0
s_add_u32 s38, s38, s5
s_addc_u32 s39, s39, 0
s_add_u32 s{sT}, s40, s5
s_addc_u32 s{sT+1}, s41, 0
global_load_dwordx4 {vr(vQE,4)}, v{vT1}, s[28:29]
global_load_dwordx4 {vr(vS+4,4)}, v{vT0}, s[38:39]
global_load_ushort v{vXT}, v{vT2}, s[42:43]
buffer_load_dwordx4 {vr(vTV,4)}, v{vVO}, s[{sT}:{sT+3}], 0 offen
""")
    g(f"s_mov_b32 s{sM}, 0")
    if not tab:
        g(f"v_mov_b32 v{vTB}, s{sA}")
        for i in range(5):
            g(f"v_bfe_i32 v{vT0}, v0, {i}, 1\nv_and_b32 v{vT0}, {hex(ct[3+i] << 12)}, v{vT0}\nv_xor_b32 v{vTB}, v{vTB}, v{vT0}")
    g(f"""
v_and_b32 v{vT0}, 1, v0
v_mov_b32 v{vT1}, 0xffff
v_lshlrev_b32 v{vT0}, 4, v{vT0}
v_lshlrev_b32 v{vT1}, v{vT0}, v{vT1}
v_bfe_u32 v{vT0}, v0, 1, 2
v_and_b32 v{vT3}, 3, v0
""")
    for r in range(4):
        g(f"v_cmp_eq_u32 vcc, {r}, v{vT0}\nv_cmp_eq_u32 s[{sQ+2*r}:{sQ+2*r+1}], {r}, v{vT3}\ns_nop 0\nv_cndmask_b32 v{vMSK+r}, 0, v{vT1}, vcc")
    g(f"""
v_mov_b32 v{vCC}, {f32(C)}
v_and_b32 v{vT0}, 0x37, v0
v_cmp_eq_u32 vcc, 0, v{vT0}
v_mov_b32 v{vT1}, s7
v_bfe_i32 v{vT2}, v0, 2, 1
v_cndmask_b32 v{vL}, 0, v{vT1}, vcc
v_lshlrev_b32 v{vLA}, 3, v0
s_mul_i32 s5, s{sHEAD}, {a.rstride}
s_add_u32 s{sWS}, s48, s5
s_addc_u32 s{sWS+1}, s49, 0
s_mov_b32 s{sWS+2}, {REGION}
s_mov_b32 s{sWS+3}, 0x20000
s_add_u32 s{sOUT}, s44, s4
s_addc_u32 s{sOUT+1}, s45, 0
s_mov_b32 s{sOUT+2}, 512
s_mov_b32 s{sOUT+3}, 0x20000
s_lshl_b32 s5, s{sHEAD}, 2
s_add_u32 s46, s46, s5
s_addc_u32 s47, s47, 0
s_lshl_b32 s{sSO}, s{sSP}, 10
s_mov_b32 s{sEMP}, {hex(EMPTY)}
v_bfe_u32 v{vT1}, v0, 3, 1
v_and_b32 v{vT0}, 7, v0
v_lshlrev_b32 v{vT0}, 1, v{vT0}
v_lshl_or_b32 v{vT0}, v{vT1}, 8, v{vT0}
v_lshrrev_b32 v{vOA}, 4, v0
v_lshl_or_b32 v{vOA}, v{vOA}, 6, v{vT0}
s_lshl_b32 s5, s{sSP}, 3
s_add_u32 s5, s5, {MLOFF}
v_lshl_add_u32 v{vMA}, v{vT1}, 7, s5
v_mov_b32 v{vCN}, 0
v_lshlrev_b32 v{vT0}, 5, v{vT3}
v_xor_b32 v{vPA}, v{vT0}, v{vMA}
v_xor_b32 v{vPA+1}, 8, v{vPA}
v_xor_b32 v{vPA+2}, 16, v{vPA}
v_xor_b32 v{vPA+3}, 24, v{vPA}
v_and_b32 v{vFA}, 15, v0
v_lshlrev_b32 v{vFA}, 3, v{vFA}
v_add_u32 v{vFA}, {MLOFF}, v{vFA}
s_mov_b32 s{sP}, 0
s_mov_b64 s[{sCHK}:{sCHK+1}], -1
s_waitcnt vmcnt({4*(D-1)+1})
v_mfma_f32_16x16x32_bf16 {vr(vS,4)}, {vr(vS+4,4)}, {vr(vQE,4)}, 0
""")
    for r in range(4):
        g(f"v_and_b32 v{vQO+r}, v{vT2}, v{vQE+r}")
    for r in range(4):
        g(f"v_xor_b32 v{vQE+r}, v{vQO+r}, v{vQE+r}")
    g(f"""
v_lshlrev_b32 v{vXT}, 16, v{vXT}
v_sub_f32 v{vXT}, 1.0, v{vXT}
v_mul_f32 v{vXT}, {f32(NEG)}, v{vXT}
""")
    for r in range(4):
        g(f"s_nop 1\nv_fmac_f32_dpp v{vXT}, v{vS+r}, v{vCC} quad_perm:[{r},{r},{r},{r}] {DPP}")
    g(f"v_mov_b32 v{vM}, v{vXT}")
    g(f"""
L_kloop:
s_add_u32 s{sM}, s{sM}, 1
s_cmp_eq_u32 s{sM}, 32
s_cbranch_scc1 L_switch
L_kbody:
""")
    if not tab:
        g(f"v_readlane_b32 s{sB}, v{vTB}, s{sM}\ns_nop 0")
    def dpp(p_, r):
        op = "v_mul_f32_dpp" if r == 0 else "v_fmac_f32_dpp"
        return f"{op} v{vX+p_}, v{vS+4*p_+r}, v{vCC} quad_perm:[{r},{r},{r},{r}] {DPP}"
    for b in range(D):
        h = off(b)
        for j in range(4):
            S = vS + 4 * (j >> 1)
            c = "0" if j % 2 == 0 else vr(S, 4)
            q = vQE if j % 2 == 0 else vQO
            g(f"s_waitcnt vmcnt({X})")
            g(f"v_mfma_f32_16x16x32_bf16 {vr(S,4)}, {vr(vR+16*b+4*j,4)}, {vr(q,4)}, {c}")
            ld(b, j, h)
        g("s_nop 0")
        g(f"{dpp(0,0)}\ns_nop 1\n{dpp(0,1)}\ns_nop 1\n{dpp(0,2)}\n{dpp(1,0)}\ns_nop 0\n{dpp(0,3)}\n{dpp(1,1)}")
        k = b & 3
        sel = f"s[{sQ+2*k}:{sQ+2*k+1}]"
        g(f"v_cndmask_b32 v{vZ}, v{vZ}, v{vX}, {sel}\ns_nop 0\n{dpp(1,2)}\ns_nop 1\n{dpp(1,3)}")
        g(f"v_cndmask_b32 v{vZ+1}, v{vZ+1}, v{vX+1}, {sel}")
        if k == 3:
            g(f"ds_write_b64 v{vLA}, {vr(vZ,2)} offset:{512*(b>>2)}\nv_max3_f32 v{vM}, v{vM}, v{vZ}, v{vZ+1}")
    g(f"""
v_add_u32 v{vLA}, 1024, v{vLA}
s_cmp_lg_u32 s{sM}, 0
s_cbranch_scc1 L_kloop
{"s_memrealtime s[54:55]" if st else ""}
v_lshlrev_b32 v{vLA}, 3, v0
v_max_f32_dpp v{vM}, v{vM}, v{vM} quad_perm:[1,0,3,2] {DPP}
s_waitcnt lgkmcnt(0)
ds_read_b64 {vr(vZ,2)}, v{vLA}
v_max_f32_dpp v{vM}, v{vM}, v{vM} quad_perm:[2,3,0,1] {DPP}
global_load_dword v{vCN}, v{vCN}, s[46:47]{co}
s_nop 0
v_max_f32_dpp v{vM}, v{vM}, v{vM} row_half_mirror {DPP}
v_mov_b32 v{vT1}, v{vM}
s_nop 1
v_permlane16_swap_b32 v{vM}, v{vT1}
v_max_f32 v{vM}, v{vM}, v{vT1}
v_mov_b32 v{vT1}, v{vM}
s_nop 1
v_permlane32_swap_b32 v{vM}, v{vT1}
v_max_f32 v{vM}, v{vM}, v{vT1}
v_sub_f32 v{vXT}, v{vXT}, v{vM}
v_exp_f32 v{vXT}, v{vXT}
s_nop 0
v_cvt_pk_bf16_f32 v{vT0}, v{vXT}, v{vXT}
v_mul_f32 v{vL}, v{vL}, v{vXT}
""")
    for r in range(4):
        g(f"v_and_b32 v{vPB+4+r}, v{vT0}, v{vMSK+r}")
    g(f"s_nop 1\nv_mfma_f32_16x16x32_bf16 {vr(vO,4)}, {vr(vTV,4)}, {vr(vPB+4,4)}, 0")
    def group(nxt):
        g(f"""
s_waitcnt lgkmcnt(0)
v_sub_f32 v{vX}, v{vZ}, v{vM}
v_sub_f32 v{vX+1}, v{vZ+1}, v{vM}
{f"ds_read_b64 {vr(vZ,2)}, v{vLA} offset:{nxt}" if nxt is not None else ""}
v_exp_f32 v{vX}, v{vX}
v_exp_f32 v{vX+1}, v{vX+1}
v_cvt_pk_bf16_f32 v{vY}, v{vX}, v{vX}
v_cvt_pk_bf16_f32 v{vY+1}, v{vX+1}, v{vX+1}
v_add_f32 v{vL}, v{vL}, v{vX}
v_mov_b32_dpp v{vY+2}, v{vY} row_half_mirror {DPP}
v_mov_b32_dpp v{vY+3}, v{vY+1} row_half_mirror {DPP}
v_add_f32 v{vL}, v{vL}, v{vX+1}
""")
    def ands(b, u):
        k = b & 3
        pb = vPB + 4 * (u & 1)
        rs = [r for r in range(4) if (r >> 1) == (u & 1)] + [r for r in range(4) if (r >> 1) != (u & 1)]
        for r in rs:
            if (r >> 1) == (u & 1):
                g(f"v_and_b32_dpp v{pb+r}, v{vY+(u>>1)}, v{vMSK+r} quad_perm:[{k},{k},{k},{k}] {DPP}")
            else:
                g(f"v_and_b32_dpp v{pb+r}, v{vY+2+(u>>1)}, v{vMSK+r} quad_perm:[{3-k},{3-k},{3-k},{3-k}] {DPP}")
    def mfV(b, u):
        g(f"v_mfma_f32_16x16x32_bf16 {vr(vO,4)}, {vr(vR+16*b+4*u,4)}, {vr(vPB+4*(u&1),4)}, {vr(vO,4)}")
    group(512)
    ands(0, 0)
    def vpass(X, last):
        for b in range(D):
            h = None if last else off(b)
            for u in range(4):
                final = last and b == D - 1 and u == 3
                if u < 3:
                    ands(b, u + 1)
                elif not final:
                    if b & 3 == 3:
                        group(None if last else 512 * ((b >> 2) + 2))
                    ands(b + 1, 0)
                if last:
                    if b == a.fat and u == 0:
                        g(f"buffer_load_dword v{vF}, v{vFA}, s[{sWS}:{sWS+3}], 0 offen{co}")
                    if b == 4 and u == 0:
                        g(f"""
v_add_f32_dpp v{vL}, v{vL}, v{vL} quad_perm:[1,0,3,2] {DPP}
s_nop 1
v_add_f32_dpp v{vL}, v{vL}, v{vL} quad_perm:[2,3,0,1] {DPP}
s_nop 1
v_add_f32_dpp v{vL}, v{vL}, v{vL} row_half_mirror {DPP}
v_mov_b32 v{vT1}, v{vL}
s_nop 1
v_permlane16_swap_b32 v{vL}, v{vT1}
v_add_f32 v{vL}, v{vL}, v{vT1}
v_mov_b32 v{vT1}, v{vL}
s_nop 1
v_permlane32_swap_b32 v{vL}, v{vT1}
v_add_f32 v{vL}, v{vL}, v{vT1}
""")
                    g(f"s_waitcnt vmcnt({31 - 4*b - u + (1 if b >= a.fat else 0)})")
                    if final:
                        g("s_nop 0")
                    mfV(b, u)
                else:
                    g(f"s_waitcnt vmcnt({X})")
                    mfV(b, u)
                    ld(b, u, h)
    def vloop(tag, X, until):
        g(f"L_vloop{tag}:\ns_add_u32 s{sM}, s{sM}, 1")
        if not tab:
            g(f"v_readlane_b32 s{sB}, v{vTB}, s{sM}\ns_nop 0")
        vpass(X, False)
        g(f"v_add_u32 v{vLA}, 1024, v{vLA}\ns_cmp_lg_u32 s{sM}, {until}\ns_cbranch_scc1 L_vloop{tag}")
    if a.M2:
        vloop("A", XV, a.M2); vloop("B", a.X2, 31)
    else:
        vloop("A", XV, 31)
    g(f"v_cmp_eq_u32 vcc, 0, v{vCN}\ns_cbranch_vccnz L_wait\nL_ready:")
    vpass(0, True)
    def pollML():
        for k in range(4):
            g(f"buffer_load_dwordx2 {vr(vPM+2*k,2)}, v{vPA+k}, s[{sWS}:{sWS+3}], 0 offen{co}")
    def pollO():
        for j in range(1, 16):
            g(f"s_xor_b32 s{4+(j&1)}, s{sSO}, {j << 10}")
            g(f"buffer_load_dwordx4 {vr(vPO+4*(j-1),4)}, v{vVO}, s[{sWS}:{sWS+3}], s{4+(j&1)} offen{co}")
    g(f"""
{"s_memrealtime s[56:57]" if st else ""}
s_waitcnt vmcnt(0)
v_cmp_eq_u32 vcc, s{sEMP}, v{vF}
s_mov_b64 exec, 0x101
buffer_store_dwordx2 {vr(vM,2)}, v{vMA}, s[{sWS}:{sWS+3}], 0 offen{co}
s_mov_b64 exec, -1
s_bcnt1_i32_b32 s4, vcc_lo
s_nop 0
s_cmp_le_u32 s4, {2 * (a.T + 1)}
buffer_store_dwordx4 {vr(vO,4)}, v{vVO}, s[{sWS}:{sWS+3}], s{sSO} offen{co}
s_cbranch_scc0 L_final
L_poll:
""")
    pollML(); pollO()
    g(f"""
s_waitcnt vmcnt(15)
v_cndmask_b32 v{vPM}, v{vPM}, v{vM}, s[{sQ}:{sQ+1}]
v_cndmask_b32 v{vPM+1}, v{vPM+1}, v{vL}, s[{sQ}:{sQ+1}]
L_have:
v_max3_f32 v{vMX}, v{vPM+2}, v{vPM+4}, v{vPM+6}
v_max_f32 v{vMX}, v{vMX}, v{vPM}
s_nop 1
v_max_f32_dpp v{vMX}, v{vMX}, v{vMX} quad_perm:[1,0,3,2] {DPP}
s_nop 1
v_max_f32_dpp v{vMX}, v{vMX}, v{vMX} quad_perm:[2,3,0,1] {DPP}
""")
    for k in range(4):
        g(f"v_sub_f32 v{vW+k}, v{vPM+2*k}, v{vMX}")
    for k in range(4):
        g(f"v_exp_f32 v{vW+k}, v{vW+k}")
    g(f"v_mul_f32 v{vLS}, v{vW}, v{vPM+1}")
    for k in range(1, 4):
        g(f"v_fmac_f32 v{vLS}, v{vW+k}, v{vPM+2*k+1}")
    g(f"""
v_cmp_u_f32 vcc, v{vLS}, v{vLS}
s_nop 0
v_add_f32_dpp v{vLS}, v{vLS}, v{vLS} quad_perm:[1,0,3,2] {DPP}
s_and_b64 vcc, vcc, s[{sCHK}:{sCHK+1}]
s_cbranch_vccnz L_fail
v_add_f32_dpp v{vLS}, v{vLS}, v{vLS} quad_perm:[2,3,0,1] {DPP}
v_rcp_f32 v{vLS}, v{vLS}
""")
    for j in range(16):
        q = j >> 2
        if j:
            g(f"s_waitcnt vmcnt({15 - j})")
        op = "v_mul_f32_dpp" if j == 0 else "v_fmac_f32_dpp"
        src = vPO + 4 * (j - 1) if j else vO
        for r in range(4):
            g(f"{op} v{vA+r}, v{vW+(j&3)}, v{src+r} quad_perm:[{q},{q},{q},{q}] {DPP}")
    for r in range(4):
        g(f"v_mul_f32 v{vA+r}, v{vA+r}, v{vLS}")
    g(f"""
v_cmp_u_f32 vcc, v{vA}, v{vA+1}
v_cmp_u_f32 s[4:5], v{vA+2}, v{vA+3}
v_cvt_pk_bf16_f32 v{vA}, v{vA}, v{vA+1}
v_cvt_pk_bf16_f32 v{vA+2}, v{vA+2}, v{vA+3}
s_or_b64 vcc, vcc, s[4:5]
s_and_b64 vcc, vcc, s[{sCHK}:{sCHK+1}]
s_cbranch_vccnz L_fail
buffer_store_short v{vA}, v{vOA}, s[{sOUT}:{sOUT+3}], 0 offen
buffer_store_short_d16_hi v{vA}, v{vOA}, s[{sOUT}:{sOUT+3}], 0 offen offset:16
buffer_store_short v{vA+2}, v{vOA}, s[{sOUT}:{sOUT+3}], 0 offen offset:32
buffer_store_short_d16_hi v{vA+2}, v{vOA}, s[{sOUT}:{sOUT+3}], 0 offen offset:48
{"s_memrealtime s[58:59]" if st else ""}
{f"s_or_b32 s{sP}, s{sP}, 16" if st else ""}
{"s_branch L_stamp" if st else "s_endpgm"}
L_fail:
s_cmp_eq_u32 s{sP}, 0
s_cbranch_scc0 L_exact
L_final:
s_mov_b32 s{sP}, 1
s_waitcnt vmcnt(0)
buffer_load_dword v{vF}, v{vFA}, s[{sWS}:{sWS+3}], 0 offen{co}
s_waitcnt vmcnt(0)
v_cmp_eq_u32 vcc, s{sEMP}, v{vF}
s_cbranch_vccz L_poll
{"s_memrealtime s[58:59]" if st else ""}
s_branch {END}
L_exact:
{"s_memrealtime s[58:59]" if st else ""}
s_waitcnt vmcnt(0)
""")
    for k in list(range(vPM, vPM + 8)) + list(range(vPO, vPO + 60)):
        g(f"v_cmpx_ne_u32 vcc, s{sEMP}, v{k}")
    g(f"""
s_nop 4
s_cmp_eq_u64 vcc, -1
s_cbranch_scc0 {END}
s_mov_b64 s[{sCHK}:{sCHK+1}], 0
s_branch L_have
L_switch:
s_mov_b32 s{sM}, 0
s_mov_b32 s{sR}, s36
s_mov_b32 s{sR+1}, s37
v_mov_b32 v{vAD}, v{vVO}
s_branch L_kbody
L_wait:
v_mov_b32 v{vT0}, 0
global_load_dword v{vCN}, v{vT0}, s[46:47]{co}
s_waitcnt vmcnt(0)
v_cmp_eq_u32 vcc, 0, v{vCN}
s_cbranch_vccnz L_wait
s_branch L_ready
L_setup:
s_cmp_ge_u32 s2, {NWG+16}
s_cbranch_scc1 L_end
s_load_dwordx4 s[44:47], s[0:1], 56
s_sub_u32 s3, s2, {NWG}
s_mul_i32 s5, s3, {a.rstride}
s_lshl_b32 s4, s3, 2
v_mov_b32 v4, {hex(EMPTY)}
v_mov_b32 v5, v4
v_mov_b32 v6, v4
v_mov_b32 v7, v4
v_lshlrev_b32 v8, 4, v0
v_mov_b32 v9, s4
v_mov_b32 v10, 1
s_mov_b32 s{sWS+2}, {REGION}
s_mov_b32 s{sWS+3}, 0x20000
s_mov_b32 s6, 0
s_waitcnt lgkmcnt(0)
s_add_u32 s{sWS}, s46, s5
s_addc_u32 s{sWS+1}, s47, 0
L_clear:
buffer_store_dwordx4 v[4:7], v8, s[{sWS}:{sWS+3}], s6 offen{co}
s_add_u32 s6, s6, 1024
s_cmp_lt_u32 s6, {REGION}
s_cbranch_scc1 L_clear
s_waitcnt vmcnt(0)
s_mov_b64 exec, 1
global_store_dword v9, v10, s[44:45]{co}
s_endpgm
{STAMP if st else ""}
L_end:
s_endpgm
""")
    acc = (nv + 3) // 4 * 4
    out = HEADER + f"; @launch grid=({NWG+16},1,1) block=(64,1,1) lds=32768\n"
    out += f""".amdgcn_target "amdgcn-amd-amdhsa--gfx950"
.text
.globl {NAME}_kernel
.p2align 8
.type {NAME}_kernel,@function
{NAME}_kernel:
""" + g.text() + f""".section .rodata,"a"
.p2align 6
.amdhsa_kernel {NAME}_kernel
  .amdhsa_next_free_vgpr {nv}
  .amdhsa_next_free_sgpr 88
  .amdhsa_accum_offset {acc}
  .amdhsa_group_segment_fixed_size 0
  .amdhsa_kernarg_size 72
  .amdhsa_user_sgpr_count 2
  .amdhsa_user_sgpr_kernarg_segment_ptr 1
  .amdhsa_system_sgpr_workgroup_id_x 1
.end_amdhsa_kernel
"""
    return out

if __name__ == "__main__":
    p = argparse.ArgumentParser()
    p.add_argument("-X", type=int, default=20)
    p.add_argument("--XV", type=int, default=0)
    p.add_argument("--X2", type=int, default=26)
    p.add_argument("--M2", type=int, default=0)
    p.add_argument("--fat", type=int, default=0)
    p.add_argument("-T", type=int, default=4)
    p.add_argument("--tab", type=int, default=0)
    p.add_argument("--rstride", type=int, default=1069056)
    p.add_argument("--cols", default="60d,10,30f,500,8208,4018,2e1c,14cb,111,700,8,484,911,418,7e,ec9")
    p.add_argument("--flags", default="nt")
    p.add_argument("--coh", default="sc1")
    p.add_argument("--stamps", type=int, default=0)
    p.add_argument("-o", default="/dev/stdout")
    a = p.parse_args()
    open(a.o, "w").write(gen(a))
```

```python
import argparse, struct, math
from gen7 import NAME, f32, HEADER, G, vr, STAMP, DPP, EMPTY

def gen(a):
    D = 8
    NWG = 256
    NREC = 1 << 28
    X, XV = a.X, a.XV or a.X
    st, tab = a.stamps, a.tab
    cal = a.cal.split(",") if a.cal else []
    def mark(name):
        if cal and name == cal[0]:
            g("s_memrealtime s[54:55]")
        if cal and name == cal[1]:
            g("s_memrealtime s[56:57]")
    END = "L_stamp" if st else "L_end"
    cols = [int(x, 16) for x in a.cols.split(",")]
    cg, ct = cols[:8], cols[8:]
    hb = [i for i in range(8) if cg[i] >> 12]
    sb = [i for i in range(8) if not cg[i] >> 12]
    assert len(hb) == 4 and all(c >> 12 == 0 for c in ct)
    fl = (" " + a.flags) if a.flags else ""
    co = " " + a.coh
    C = (128 ** -0.5) * math.log2(math.e)
    NEG = -1e9 * math.log2(math.e)
    MLOFF = 16384
    REGION = MLOFF + 256
    g = G()
    vAD, vVO, vT0 = 1, 2, 3
    vQE, vQO = 4, 8
    vMSK = 12
    vO = 16
    vM, vL = 20, 21
    vT1, vT2, vT3, vCC = 22, 23, 24, 25
    vX = 26
    vZ = 28
    vY = 30
    vLA = 34
    vXT = 35
    vS = 36
    vPB = 44
    vTV = 52
    vCN, vMA, vOA = 56, 57, 58
    vF, vFA = 59, 60
    vLS, vMX = 61, 62
    vTB = 64
    vPA = 72
    vW, vA = 76, 80
    vPM = 84
    vR = 96
    vPO = vR
    nv = vR + 16 * D
    sR, sT, sWS, sOUT = 8, 64, 68, 72
    sA, sB, sM, sHEAD, sSP = 24, 25, 26, 19, 3
    sH = 20
    sP, sSO = 18, 27
    sCHK, sEMP = 34, 33
    sQ = 76
    T = lambda n: __import__("functools").reduce(lambda x, y: x ^ y, [ct[i] for i in range(8) if n >> i & 1], 0) << 12
    g(f"""
s_cmp_ge_u32 s2, {NWG}
s_cbranch_scc1 L_setup
{"s_memrealtime s[52:53]" if st or cal else ""}
""")
    mark("entry")
    g(f"""
s_load_dwordx4 s[28:31], s[0:1], 0
s_load_dwordx8 s[36:43], s[0:1], 16
s_load_dwordx4 s[44:47], s[0:1], 48
s_load_dwordx2 s[48:49], s[0:1], 64
s_mov_b32 s{sA}, 0
""")
    for i in range(8):
        g(f"s_bitcmp1_b32 s2, {i}\ns_cselect_b32 s4, {hex(cg[i] << 12)}, 0\ns_xor_b32 s{sA}, s{sA}, s4")
    if sb == list(range(sb[0], sb[0] + 4)):
        g(f"s_bfe_u32 s{sSP}, s2, {hex((4 << 16) | sb[0])}")
    else:
        g(f"s_mov_b32 s{sSP}, 0")
        for i in sb:
            g(f"s_bitcmp1_b32 s2, {i}\ns_cselect_b32 s4, {1 << sb.index(i)}, 0\ns_or_b32 s{sSP}, s{sSP}, s4")
    g(f"""
s_lshr_b32 s{sHEAD}, s{sA}, 24
v_lshlrev_b32 v{vVO}, 4, v0
v_and_b32 v{vT0}, 3, v0
v_lshrrev_b32 v{vT1}, 4, v0
v_lshlrev_b32 v{vT0}, 4, v{vT0}
v_lshl_or_b32 v{vT0}, v{vT1}, 6, v{vT0}
v_bfe_u32 v{vT1}, v0, 2, 2
v_lshl_or_b32 v{vAD}, v{vT1}, 8, v{vT0}
v_bfe_u32 v{vT1}, v0, 3, 1
v_lshl_or_b32 v{vT1}, v{vT1}, 8, v{vT0}
v_mov_b32 v{vT2}, 0
s_mov_b32 s{sR+2}, {NREC}
s_mov_b32 s{sR+3}, 0x20000
s_cmp_eq_u32 s{sSP}, 0
s_cselect_b32 s{sT+2}, 256, 0
s_cselect_b32 s7, 1.0, 0
s_mov_b32 s{sT+3}, 0x20000
s_lshl_b32 s4, s{sHEAD}, 9
s_lshl_b32 s5, s{sHEAD}, 8
s_mov_b32 s{sB}, s{sA}
s_waitcnt lgkmcnt(0)
s_mov_b32 s{sR}, s30
s_mov_b32 s{sR+1}, s31
""")
    mark("karg")
    if tab:
        g(f"""
s_lshl_b32 s6, s2, 11
s_add_u32 s6, s6, 0x38000000
s_add_u32 s50, s48, s6
s_addc_u32 s51, s49, 0
v_lshlrev_b32 v{vT3}, 5, v0
global_load_dwordx4 {vr(vTB,4)}, v{vT3}, s[50:51]
global_load_dwordx4 {vr(vTB+4,4)}, v{vT3}, s[50:51] offset:16
s_mov_b32 s{sM}, 0
s_waitcnt vmcnt(0)
""")
    def off(b):
        h = sH + (b & 1)
        if tab:
            g(f"v_readlane_b32 s6, v{vTB+b}, s{sM}\ns_nop 0\ns_mov_b32 s{h}, s6")
        else:
            g(f"s_xor_b32 s{h}, s{sB}, {hex(T(b))}")
        return h
    def ld(slot, j, so):
        g(f"buffer_load_dwordx4 {vr(vR+16*slot+4*j,4)}, v{vAD}, s[{sR}:{sR+3}], s{so} offen offset:{1024*j}{fl}")
    for t in range(D):
        h = off(t)
        for j in range(4):
            ld(t, j, h)
        if t == 0:
            g(f"""
s_add_u32 s28, s28, s4
s_addc_u32 s29, s29, 0
s_add_u32 s38, s38, s5
s_addc_u32 s39, s39, 0
s_add_u32 s{sT}, s40, s5
s_addc_u32 s{sT+1}, s41, 0
global_load_dwordx4 {vr(vQE,4)}, v{vT1}, s[28:29]
global_load_dwordx4 {vr(vS+4,4)}, v{vT0}, s[38:39]
global_load_ushort v{vXT}, v{vT2}, s[42:43]
buffer_load_dwordx4 {vr(vTV,4)}, v{vVO}, s[{sT}:{sT+3}], 0 offen
""")
    mark("filled")
    g(f"s_mov_b32 s{sM}, 0")
    if not tab:
        g(f"v_mov_b32 v{vTB}, s{sA}")
        for i in range(5):
            g(f"v_bfe_i32 v{vT0}, v0, {i}, 1\nv_and_b32 v{vT0}, {hex(ct[3+i] << 12)}, v{vT0}\nv_xor_b32 v{vTB}, v{vTB}, v{vT0}")
    g(f"""
v_and_b32 v{vT0}, 1, v0
v_mov_b32 v{vT1}, 0xffff
v_lshlrev_b32 v{vT0}, 4, v{vT0}
v_lshlrev_b32 v{vT1}, v{vT0}, v{vT1}
v_bfe_u32 v{vT0}, v0, 1, 2
v_and_b32 v{vT3}, 3, v0
""")
    for r in range(4):
        g(f"v_cmp_eq_u32 vcc, {r}, v{vT0}\nv_cmp_eq_u32 s[{sQ+2*r}:{sQ+2*r+1}], {r}, v{vT3}\ns_nop 0\nv_cndmask_b32 v{vMSK+r}, 0, v{vT1}, vcc")
    g(f"""
v_mov_b32 v{vCC}, {f32(C)}
v_and_b32 v{vT0}, 0x37, v0
v_cmp_eq_u32 vcc, 0, v{vT0}
v_mov_b32 v{vT1}, s7
v_bfe_i32 v{vT2}, v0, 2, 1
v_cndmask_b32 v{vL}, 0, v{vT1}, vcc
v_lshlrev_b32 v{vLA}, 3, v0
s_mul_i32 s5, s{sHEAD}, {a.rstride}
s_add_u32 s{sWS}, s48, s5
s_addc_u32 s{sWS+1}, s49, 0
s_mov_b32 s{sWS+2}, {REGION}
s_mov_b32 s{sWS+3}, 0x20000
s_add_u32 s{sOUT}, s44, s4
s_addc_u32 s{sOUT+1}, s45, 0
s_mov_b32 s{sOUT+2}, 512
s_mov_b32 s{sOUT+3}, 0x20000
s_lshl_b32 s5, s{sHEAD}, 2
s_add_u32 s46, s46, s5
s_addc_u32 s47, s47, 0
s_lshl_b32 s{sSO}, s{sSP}, 10
s_mov_b32 s{sEMP}, {hex(EMPTY)}
v_bfe_u32 v{vT1}, v0, 3, 1
v_and_b32 v{vT0}, 7, v0
v_lshlrev_b32 v{vT0}, 1, v{vT0}
v_lshl_or_b32 v{vT0}, v{vT1}, 8, v{vT0}
v_lshrrev_b32 v{vOA}, 4, v0
v_lshl_or_b32 v{vOA}, v{vOA}, 6, v{vT0}
s_lshl_b32 s5, s{sSP}, 3
s_add_u32 s5, s5, {MLOFF}
v_lshl_add_u32 v{vMA}, v{vT1}, 7, s5
v_mov_b32 v{vCN}, 0
v_lshlrev_b32 v{vT0}, 5, v{vT3}
v_xor_b32 v{vPA}, v{vT0}, v{vMA}
v_xor_b32 v{vPA+1}, 8, v{vPA}
v_xor_b32 v{vPA+2}, 16, v{vPA}
v_xor_b32 v{vPA+3}, 24, v{vPA}
v_and_b32 v{vFA}, 15, v0
v_lshlrev_b32 v{vFA}, 3, v{vFA}
v_add_u32 v{vFA}, {MLOFF}, v{vFA}
s_mov_b32 s{sP}, 0
s_mov_b64 s[{sCHK}:{sCHK+1}], -1
s_waitcnt vmcnt({4*(D-1)+1})
v_mfma_f32_16x16x32_bf16 {vr(vS,4)}, {vr(vS+4,4)}, {vr(vQE,4)}, 0
""")
    for r in range(4):
        g(f"v_and_b32 v{vQO+r}, v{vT2}, v{vQE+r}")
    for r in range(4):
        g(f"v_xor_b32 v{vQE+r}, v{vQO+r}, v{vQE+r}")
    g(f"""
v_lshlrev_b32 v{vXT}, 16, v{vXT}
v_sub_f32 v{vXT}, 1.0, v{vXT}
v_mul_f32 v{vXT}, {f32(NEG)}, v{vXT}
""")
    for r in range(4):
        g(f"s_nop 1\nv_fmac_f32_dpp v{vXT}, v{vS+r}, v{vCC} quad_perm:[{r},{r},{r},{r}] {DPP}")
    g(f"v_mov_b32 v{vM}, v{vXT}")
    mark("kstart")
    g(f"""
L_kloop:
s_add_u32 s{sM}, s{sM}, 1
s_cmp_eq_u32 s{sM}, 32
s_cbranch_scc1 L_switch
L_kbody:
""")
    if not tab:
        g(f"v_readlane_b32 s{sB}, v{vTB}, s{sM}\ns_nop 0")
    def dpp(p_, r):
        op = "v_mul_f32_dpp" if r == 0 else "v_fmac_f32_dpp"
        return f"{op} v{vX+p_}, v{vS+4*p_+r}, v{vCC} quad_perm:[{r},{r},{r},{r}] {DPP}"
    for b in range(D):
        h = off(b)
        for j in range(4):
            S = vS + 4 * (j >> 1)
            c = "0" if j % 2 == 0 else vr(S, 4)
            q = vQE if j % 2 == 0 else vQO
            g(f"s_waitcnt vmcnt({X})")
            g(f"v_mfma_f32_16x16x32_bf16 {vr(S,4)}, {vr(vR+16*b+4*j,4)}, {vr(q,4)}, {c}")
            ld(b, j, h)
        g("s_nop 0")
        g(f"{dpp(0,0)}\ns_nop 1\n{dpp(0,1)}\ns_nop 1\n{dpp(0,2)}\n{dpp(1,0)}\ns_nop 0\n{dpp(0,3)}\n{dpp(1,1)}")
        k = b & 3
        sel = f"s[{sQ+2*k}:{sQ+2*k+1}]"
        g(f"v_cndmask_b32 v{vZ}, v{vZ}, v{vX}, {sel}\ns_nop 0\n{dpp(1,2)}\ns_nop 1\n{dpp(1,3)}")
        g(f"v_cndmask_b32 v{vZ+1}, v{vZ+1}, v{vX+1}, {sel}")
        if k == 3:
            g(f"ds_write_b64 v{vLA}, {vr(vZ,2)} offset:{512*(b>>2)}\nv_max3_f32 v{vM}, v{vM}, v{vZ}, v{vZ+1}")
    g(f"""
v_add_u32 v{vLA}, 1024, v{vLA}
s_cmp_lg_u32 s{sM}, 0
s_cbranch_scc1 L_kloop
{"s_memrealtime s[54:55]" if st else ""}
v_lshlrev_b32 v{vLA}, 3, v0
v_max_f32_dpp v{vM}, v{vM}, v{vM} quad_perm:[1,0,3,2] {DPP}
s_waitcnt lgkmcnt(0)
ds_read_b64 {vr(vZ,2)}, v{vLA}
v_max_f32_dpp v{vM}, v{vM}, v{vM} quad_perm:[2,3,0,1] {DPP}
global_load_dword v{vCN}, v{vCN}, s[46:47]{co}
s_nop 0
v_max_f32_dpp v{vM}, v{vM}, v{vM} row_half_mirror {DPP}
v_mov_b32 v{vT1}, v{vM}
s_nop 1
v_permlane16_swap_b32 v{vM}, v{vT1}
v_max_f32 v{vM}, v{vM}, v{vT1}
v_mov_b32 v{vT1}, v{vM}
s_nop 1
v_permlane32_swap_b32 v{vM}, v{vT1}
v_max_f32 v{vM}, v{vM}, v{vT1}
v_sub_f32 v{vXT}, v{vXT}, v{vM}
v_exp_f32 v{vXT}, v{vXT}
s_nop 0
v_cvt_pk_bf16_f32 v{vT0}, v{vXT}, v{vXT}
v_mul_f32 v{vL}, v{vL}, v{vXT}
""")
    for r in range(4):
        g(f"v_and_b32 v{vPB+4+r}, v{vT0}, v{vMSK+r}")
    g(f"s_nop 1\nv_mfma_f32_16x16x32_bf16 {vr(vO,4)}, {vr(vTV,4)}, {vr(vPB+4,4)}, 0")
    def group(nxt):
        g(f"""
s_waitcnt lgkmcnt(0)
v_sub_f32 v{vX}, v{vZ}, v{vM}
v_sub_f32 v{vX+1}, v{vZ+1}, v{vM}
{f"ds_read_b64 {vr(vZ,2)}, v{vLA} offset:{nxt}" if nxt is not None else ""}
v_exp_f32 v{vX}, v{vX}
v_exp_f32 v{vX+1}, v{vX+1}
v_cvt_pk_bf16_f32 v{vY}, v{vX}, v{vX}
v_cvt_pk_bf16_f32 v{vY+1}, v{vX+1}, v{vX+1}
v_add_f32 v{vL}, v{vL}, v{vX}
v_mov_b32_dpp v{vY+2}, v{vY} row_half_mirror {DPP}
v_mov_b32_dpp v{vY+3}, v{vY+1} row_half_mirror {DPP}
v_add_f32 v{vL}, v{vL}, v{vX+1}
""")
    def ands(b, u):
        k = b & 3
        pb = vPB + 4 * (u & 1)
        rs = [r for r in range(4) if (r >> 1) == (u & 1)] + [r for r in range(4) if (r >> 1) != (u & 1)]
        for r in rs:
            if (r >> 1) == (u & 1):
                g(f"v_and_b32_dpp v{pb+r}, v{vY+(u>>1)}, v{vMSK+r} quad_perm:[{k},{k},{k},{k}] {DPP}")
            else:
                g(f"v_and_b32_dpp v{pb+r}, v{vY+2+(u>>1)}, v{vMSK+r} quad_perm:[{3-k},{3-k},{3-k},{3-k}] {DPP}")
    def mfV(b, u):
        g(f"v_mfma_f32_16x16x32_bf16 {vr(vO,4)}, {vr(vR+16*b+4*u,4)}, {vr(vPB+4*(u&1),4)}, {vr(vO,4)}")
    mark("vstart")
    group(512)
    ands(0, 0)
    def vpass(X, last):
        for b in range(D):
            h = None if last else off(b)
            for u in range(4):
                final = last and b == D - 1 and u == 3
                if u < 3:
                    ands(b, u + 1)
                elif not final:
                    if b & 3 == 3:
                        group(None if last else 512 * ((b >> 2) + 2))
                    ands(b + 1, 0)
                if last:
                    if b == a.fat and u == 0:
                        g(f"buffer_load_dword v{vF}, v{vFA}, s[{sWS}:{sWS+3}], 0 offen{co}")
                    if b == 4 and u == 0:
                        g(f"""
v_add_f32_dpp v{vL}, v{vL}, v{vL} quad_perm:[1,0,3,2] {DPP}
s_nop 1
v_add_f32_dpp v{vL}, v{vL}, v{vL} quad_perm:[2,3,0,1] {DPP}
s_nop 1
v_add_f32_dpp v{vL}, v{vL}, v{vL} row_half_mirror {DPP}
v_mov_b32 v{vT1}, v{vL}
s_nop 1
v_permlane16_swap_b32 v{vL}, v{vT1}
v_add_f32 v{vL}, v{vL}, v{vT1}
v_mov_b32 v{vT1}, v{vL}
s_nop 1
v_permlane32_swap_b32 v{vL}, v{vT1}
v_add_f32 v{vL}, v{vL}, v{vT1}
""")
                    g(f"s_waitcnt vmcnt({31 - 4*b - u + (1 if b >= a.fat else 0)})")
                    if final:
                        g("s_nop 0")
                    mfV(b, u)
                else:
                    g(f"s_waitcnt vmcnt({X})")
                    mfV(b, u)
                    ld(b, u, h)
    def vloop(tag, X, until):
        g(f"L_vloop{tag}:\ns_add_u32 s{sM}, s{sM}, 1")
        if not tab:
            g(f"v_readlane_b32 s{sB}, v{vTB}, s{sM}\ns_nop 0")
        vpass(X, False)
        g(f"v_add_u32 v{vLA}, 1024, v{vLA}\ns_cmp_lg_u32 s{sM}, {until}\ns_cbranch_scc1 L_vloop{tag}")
    if a.M2:
        vloop("A", XV, a.M2); vloop("B", a.X2, 31)
    else:
        vloop("A", XV, 31)
    g(f"v_cmp_eq_u32 vcc, 0, v{vCN}\ns_cbranch_vccnz L_wait\nL_ready:")
    mark("drain")
    vpass(0, True)
    mark("done")
    def pollML():
        for k in range(4):
            g(f"buffer_load_dwordx2 {vr(vPM+2*k,2)}, v{vPA+k}, s[{sWS}:{sWS+3}], 0 offen{co}")
    def pollO():
        for j in range(1, 16):
            g(f"s_xor_b32 s{4+(j&1)}, s{sSO}, {j << 10}")
            g(f"buffer_load_dwordx4 {vr(vPO+4*(j-1),4)}, v{vVO}, s[{sWS}:{sWS+3}], s{4+(j&1)} offen{co}")
    g(f"""
{"s_memrealtime s[56:57]" if st else ""}
s_waitcnt vmcnt(0)
v_cmp_eq_u32 vcc, s{sEMP}, v{vF}
s_mov_b64 exec, 0x101
buffer_store_dwordx2 {vr(vM,2)}, v{vMA}, s[{sWS}:{sWS+3}], 0 offen{co}
s_mov_b64 exec, -1
s_bcnt1_i32_b32 s4, vcc_lo
s_nop 0
s_cmp_le_u32 s4, {2 * (a.T + 1)}
buffer_store_dwordx4 {vr(vO,4)}, v{vVO}, s[{sWS}:{sWS+3}], s{sSO} offen{co}
s_cbranch_scc0 L_final
L_poll:
""")
    pollML(); pollO()
    g(f"""
s_waitcnt vmcnt(15)
v_cndmask_b32 v{vPM}, v{vPM}, v{vM}, s[{sQ}:{sQ+1}]
v_cndmask_b32 v{vPM+1}, v{vPM+1}, v{vL}, s[{sQ}:{sQ+1}]
L_have:
v_max3_f32 v{vMX}, v{vPM+2}, v{vPM+4}, v{vPM+6}
v_max_f32 v{vMX}, v{vMX}, v{vPM}
s_nop 1
v_max_f32_dpp v{vMX}, v{vMX}, v{vMX} quad_perm:[1,0,3,2] {DPP}
s_nop 1
v_max_f32_dpp v{vMX}, v{vMX}, v{vMX} quad_perm:[2,3,0,1] {DPP}
""")
    for k in range(4):
        g(f"v_sub_f32 v{vW+k}, v{vPM+2*k}, v{vMX}")
    for k in range(4):
        g(f"v_exp_f32 v{vW+k}, v{vW+k}")
    g(f"v_mul_f32 v{vLS}, v{vW}, v{vPM+1}")
    for k in range(1, 4):
        g(f"v_fmac_f32 v{vLS}, v{vW+k}, v{vPM+2*k+1}")
    g(f"""
v_cmp_u_f32 vcc, v{vLS}, v{vLS}
s_nop 0
v_add_f32_dpp v{vLS}, v{vLS}, v{vLS} quad_perm:[1,0,3,2] {DPP}
s_and_b64 vcc, vcc, s[{sCHK}:{sCHK+1}]
s_cbranch_vccnz L_fail
v_add_f32_dpp v{vLS}, v{vLS}, v{vLS} quad_perm:[2,3,0,1] {DPP}
v_rcp_f32 v{vLS}, v{vLS}
""")
    for j in range(16):
        q = j >> 2
        if j:
            g(f"s_waitcnt vmcnt({15 - j})")
        op = "v_mul_f32_dpp" if j == 0 else "v_fmac_f32_dpp"
        src = vPO + 4 * (j - 1) if j else vO
        for r in range(4):
            g(f"{op} v{vA+r}, v{vW+(j&3)}, v{src+r} quad_perm:[{q},{q},{q},{q}] {DPP}")
    for r in range(4):
        g(f"v_mul_f32 v{vA+r}, v{vA+r}, v{vLS}")
    g(f"""
v_cmp_u_f32 vcc, v{vA}, v{vA+1}
v_cmp_u_f32 s[4:5], v{vA+2}, v{vA+3}
v_cvt_pk_bf16_f32 v{vA}, v{vA}, v{vA+1}
v_cvt_pk_bf16_f32 v{vA+2}, v{vA+2}, v{vA+3}
s_or_b64 vcc, vcc, s[4:5]
s_and_b64 vcc, vcc, s[{sCHK}:{sCHK+1}]
s_cbranch_vccnz L_fail
buffer_store_short v{vA}, v{vOA}, s[{sOUT}:{sOUT+3}], 0 offen
buffer_store_short_d16_hi v{vA}, v{vOA}, s[{sOUT}:{sOUT+3}], 0 offen offset:16
buffer_store_short v{vA+2}, v{vOA}, s[{sOUT}:{sOUT+3}], 0 offen offset:32
buffer_store_short_d16_hi v{vA+2}, v{vOA}, s[{sOUT}:{sOUT+3}], 0 offen offset:48
""")
    mark("out")
    if cal:
        g(f"""
s_waitcnt lgkmcnt(0)
s_sub_u32 s54, s56, s54
s_sub_u32 s54, s54, {a.calbase}
s_lshl_b32 s54, s54, 4
s_add_u32 s54, s54, 10000
s_min_u32 s54, s54, 40000
L_cal:
s_memrealtime s[56:57]
s_waitcnt lgkmcnt(0)
s_sub_u32 s56, s56, s52
s_cmp_lt_u32 s56, s54
s_cbranch_scc1 L_cal
""")
    g(f"""
{"s_memrealtime s[58:59]" if st else ""}
{f"s_or_b32 s{sP}, s{sP}, 16" if st else ""}
{"s_branch L_stamp" if st else "s_endpgm"}
L_fail:
s_cmp_eq_u32 s{sP}, 0
s_cbranch_scc0 L_exact
L_final:
s_mov_b32 s{sP}, 1
s_waitcnt vmcnt(0)
buffer_load_dword v{vF}, v{vFA}, s[{sWS}:{sWS+3}], 0 offen{co}
s_waitcnt vmcnt(0)
v_cmp_eq_u32 vcc, s{sEMP}, v{vF}
s_cbranch_vccz L_poll
{"s_memrealtime s[58:59]" if st else ""}
s_branch {END}
L_exact:
{"s_memrealtime s[58:59]" if st else ""}
s_waitcnt vmcnt(0)
""")
    for k in list(range(vPM, vPM + 8)) + list(range(vPO, vPO + 60)):
        g(f"v_cmpx_ne_u32 vcc, s{sEMP}, v{k}")
    g(f"""
s_nop 4
s_cmp_eq_u64 vcc, -1
s_cbranch_scc0 {END}
s_mov_b64 s[{sCHK}:{sCHK+1}], 0
s_branch L_have
L_switch:
s_mov_b32 s{sM}, 0
s_mov_b32 s{sR}, s36
s_mov_b32 s{sR+1}, s37
v_mov_b32 v{vAD}, v{vVO}
s_branch L_kbody
L_wait:
v_mov_b32 v{vT0}, 0
global_load_dword v{vCN}, v{vT0}, s[46:47]{co}
s_waitcnt vmcnt(0)
v_cmp_eq_u32 vcc, 0, v{vCN}
s_cbranch_vccnz L_wait
s_branch L_ready
L_setup:
s_cmp_ge_u32 s2, {NWG+16}
s_cbranch_scc1 L_end
s_load_dwordx4 s[44:47], s[0:1], 56
s_sub_u32 s3, s2, {NWG}
s_mul_i32 s5, s3, {a.rstride}
s_lshl_b32 s4, s3, 2
v_mov_b32 v4, {hex(EMPTY)}
v_mov_b32 v5, v4
v_mov_b32 v6, v4
v_mov_b32 v7, v4
v_lshlrev_b32 v8, 4, v0
v_mov_b32 v9, s4
v_mov_b32 v10, 1
s_mov_b32 s{sWS+2}, {REGION}
s_mov_b32 s{sWS+3}, 0x20000
s_mov_b32 s6, 0
s_waitcnt lgkmcnt(0)
s_add_u32 s{sWS}, s46, s5
s_addc_u32 s{sWS+1}, s47, 0
L_clear:
buffer_store_dwordx4 v[4:7], v8, s[{sWS}:{sWS+3}], s6 offen{co}
s_add_u32 s6, s6, 1024
s_cmp_lt_u32 s6, {REGION}
s_cbranch_scc1 L_clear
s_waitcnt vmcnt(0)
s_mov_b64 exec, 1
global_store_dword v9, v10, s[44:45]{co}
s_endpgm
{STAMP if st else ""}
L_end:
s_endpgm
""")
    acc = (nv + 3) // 4 * 4
    out = HEADER + f"; @launch grid=({NWG+16},1,1) block=(64,1,1) lds=32768\n"
    out += f""".amdgcn_target "amdgcn-amd-amdhsa--gfx950"
.text
.globl {NAME}_kernel
.p2align 8
.type {NAME}_kernel,@function
{NAME}_kernel:
""" + g.text() + f""".section .rodata,"a"
.p2align 6
.amdhsa_kernel {NAME}_kernel
  .amdhsa_next_free_vgpr {nv}
  .amdhsa_next_free_sgpr 88
  .amdhsa_accum_offset {acc}
  .amdhsa_group_segment_fixed_size 0
  .amdhsa_kernarg_size 72
  .amdhsa_user_sgpr_count 2
  .amdhsa_user_sgpr_kernarg_segment_ptr 1
  .amdhsa_system_sgpr_workgroup_id_x 1
.end_amdhsa_kernel
"""
    return out

if __name__ == "__main__":
    p = argparse.ArgumentParser()
    p.add_argument("-X", type=int, default=20)
    p.add_argument("--XV", type=int, default=0)
    p.add_argument("--X2", type=int, default=26)
    p.add_argument("--M2", type=int, default=0)
    p.add_argument("--fat", type=int, default=0)
    p.add_argument("-T", type=int, default=4)
    p.add_argument("--cal", default="")
    p.add_argument("--calbase", type=int, default=0)
    p.add_argument("--tab", type=int, default=0)
    p.add_argument("--rstride", type=int, default=1069056)
    p.add_argument("--cols", default="919,a9f,3de,b87,1220,431c,8498,283b,10,b04,18,d9d,696,ffe,803,18a")
    p.add_argument("--flags", default="nt")
    p.add_argument("--coh", default="sc1")
    p.add_argument("--stamps", type=int, default=0)
    p.add_argument("-o", default="/dev/stdout")
    a = p.parse_args()
    open(a.o, "w").write(gen(a))
```
